```python
import torch

def _softmax(x, axis=-1):
    return torch.softmax(x, dim=axis)
def _gelu(x):
    return torch.nn.functional.gelu(x, approximate="tanh")
def _silu(x):
    return torch.nn.functional.silu(x)
def _sigmoid(x):
    return torch.sigmoid(x)
def _layernorm(x, axis=-1, eps=1e-5):
    m = x.mean(dim=axis, keepdim=True)
    v = x.var(dim=axis, keepdim=True, unbiased=False)
    return (x - m) / torch.sqrt(v + eps)
def _scatter_add(tgt, idx, src, axis=0):
    return tgt.clone().index_add_(axis, idx, src)
def _segment_sum(src, seg, n):
    out = torch.zeros((n,) + src.shape[1:], dtype=src.dtype)
    return out.index_add_(0, seg, src)
def _pad(x, pw):
    flat = tuple(v for pair in reversed(pw) for v in pair)
    return torch.nn.functional.pad(x, flat)

kernel_name = 'standalone__mha_block_cached__near_ridge'

def setup_inputs():

    _w = (lambda a: (lambda t: t.to(torch.bfloat16) if t.is_floating_point() else t)(torch.as_tensor(a)))
    B, Sq, D = 16, 112, 448
    H, Sk, Dh = 16, 512, 256
    return {
        "x": _w((lambda *s: torch.randn(*s, dtype=torch.bfloat16) * 0.8)(B, Sq, D)),
        "k_cache": _w((lambda *s: torch.randn(*s, dtype=torch.bfloat16) * 0.8)(B, H, Sk, Dh)),
        "v_cache": _w((lambda *s: torch.randn(*s, dtype=torch.bfloat16) * 0.05)(B, H, Sk, Dh)),
        "wq": _w((lambda *s: torch.randn(*s, dtype=torch.bfloat16) * 0.8)(D, H * Dh) * (D ** -0.5)),
        "wo": _w((lambda *s: torch.randn(*s, dtype=torch.bfloat16) * 0.05)(H * Dh, D) * ((H * Dh) ** -0.5)),
    }

def reference(x, k_cache, v_cache, wq, wo):
    B, Sq, D = x.shape
    H, Dh = 16, 256
    q = (lambda x, *d: x.permute(*d))((x @ wq).reshape(B, Sq, H, Dh), 0, 2, 1, 3)
    scores = torch.einsum("bhqd,bhkd->bhqk", q, k_cache) * (Dh ** -0.5)
    p = _softmax(scores, axis=-1)
    o = torch.einsum("bhqk,bhkd->bhqd", p, v_cache)
    return (lambda x, *d: x.permute(*d))(o, 0, 2, 1, 3).reshape(B, Sq, H * Dh) @ wo
```

```python
import re


def R(kind, lo, n=1):
    return [(kind, lo + i) for i in range(n)]


def parse_regs(tok):
    tok = tok.strip()
    neg = tok.lstrip('-')
    m = re.fullmatch(r'([vas])\[(\d+):(\d+)\]', neg)
    if m:
        return R(m.group(1), int(m.group(2)), int(m.group(3)) - int(m.group(2)) + 1)
    m = re.fullmatch(r'([vas])(\d+)', neg)
    if m:
        return [(m.group(1), int(m.group(2)))]
    if neg in ('m0', 'scc'):
        return [(neg, 0)]
    if neg in ('vcc', 'exec'):
        return [(neg, 0)]
    return []


def rr(kind, lo, n):
    return f"{kind}{lo}" if n == 1 else f"{kind}[{lo}:{lo + n - 1}]"


class Ins:
    __slots__ = ('text', 'rd', 'wr', 'kind', 'tag', 'states', 'srcc', 'exactc', 'note')

    def __init__(self, text, rd=(), wr=(), kind='other', tag=None, states=1, srcc=(), note=None):
        self.text = text
        self.rd = list(rd)
        self.wr = list(wr)
        self.kind = kind
        self.tag = tag
        self.states = states
        self.srcc = list(srcc)
        self.note = note


TRANS = ('v_exp_f32', 'v_log_f32', 'v_rcp_f32', 'v_rsq_f32', 'v_sqrt_f32')


def ops(text):
    parts = text.split(None, 1)
    op = parts[0]
    rest = parts[1] if len(parts) > 1 else ''
    toks = [t.strip() for t in rest.split(',')]
    return op, toks


def valu(text, extra_rd=(), extra_wr=()):
    op, toks = ops(text)
    last = toks[-1].split()
    toks[-1] = last[0] if last else ''
    wr = parse_regs(toks[0])
    rd = []
    for t in toks[1:]:
        rd += parse_regs(t)
    kind = 'valu'
    base = op.replace('_e32', '').replace('_e64', '')
    if base in TRANS:
        kind = 'trans'
    if base in ('v_fmac_f32', 'v_dot2c_f32_bf16'):
        rd += wr
    if base.startswith('v_permlane32_swap') or base.startswith('v_permlane16_swap'):
        kind = 'permlane'
        rd = parse_regs(toks[0]) + parse_regs(toks[1])
        wr = list(rd)
    if base in ('v_readfirstlane_b32', 'v_readlane_b32'):
        kind = 'readlane'
    if base.startswith('v_cmp'):
        kind = 'vcmp'
    if base == 'v_cndmask_b32' and len(toks) == 4:
        pass
    return Ins(text, rd + list(extra_rd), wr + list(extra_wr), kind)


def salu(text, extra_rd=(), extra_wr=()):
    op, toks = ops(text)
    wr = parse_regs(toks[0]) if toks and toks[0] else []
    rd = []
    for t in toks[1:]:
        rd += parse_regs(t)
    if op.startswith('s_cmp'):
        rd = rd + wr
        wr = [('scc', 0)]
    return Ins(text, rd + list(extra_rd), wr + list(extra_wr), 'salu')


def mfma(d, a, b, c):
    D = R(d[0], d[1], 16)
    A = R(a[0], a[1], 4)
    B = R(b[0], b[1], 4)
    if c == 0:
        ctext = '0'
        C = []
    else:
        ctext = rr(c[0], c[1], 16)
        C = R(c[0], c[1], 16)
    t = f"v_mfma_f32_32x32x16_bf16 {rr(d[0], d[1], 16)},{rr(a[0], a[1], 4)},{rr(b[0], b[1], 4)},{ctext}"
    i = Ins(t, A + B + C, D, 'mfma', srcc=C)
    i.note = (A + B, C, D)
    return i


def ds_read(op, dst, n, addr, off):
    assert 0 <= off < 65536, off
    t = f"{op} {rr(dst[0], dst[1], n)},v{addr}" + (f" offset:{off}" if off else '')
    return Ins(t, [('v', addr)], R(dst[0], dst[1], n), 'ds_read')


def ds_write(op, addr, src, n, off):
    assert 0 <= off < 65536, off
    t = f"{op} v{addr},{rr(src[0], src[1], n)}" + (f" offset:{off}" if off else '')
    return Ins(t, [('v', addr)] + R(src[0], src[1], n), [], 'ds_write')


def buf_load(dst, n, voff, srd, soff, imm=0, flags='', tag=None):
    op = {1: 'buffer_load_dword', 2: 'buffer_load_dwordx2', 4: 'buffer_load_dwordx4'}[n]
    assert 0 <= imm < 4096
    so = soff if isinstance(soff, str) else str(soff)
    t = f"{op} {rr(dst[0], dst[1], n)},v{voff},s[{srd}:{srd + 3}],{so} offen" + (f" offset:{imm}" if imm else '') + (' ' + flags if flags else '')
    return Ins(t, [('v', voff)] + R('s', srd, 4) + parse_regs(so), R(dst[0], dst[1], n), 'vload', tag)


def dma(voff, srd, soff, imm=0, flags='', tag=None):
    assert 0 <= imm < 4096
    so = soff if isinstance(soff, str) else str(soff)
    t = f"buffer_load_dwordx4 v{voff},s[{srd}:{srd + 3}],{so} offen" + (f" offset:{imm}" if imm else '') + (' ' + flags if flags else '') + ' lds'
    return Ins(t, [('v', voff), ('m0', 0)] + R('s', srd, 4) + parse_regs(so), [], 'dma', tag)


def buf_store(src, n, voff, srd, soff, imm=0, flags='', tag=None):
    op = {1: 'buffer_store_dword', 2: 'buffer_store_dwordx2', 4: 'buffer_store_dwordx4'}[n]
    assert 0 <= imm < 4096
    so = soff if isinstance(soff, str) else str(soff)
    t = f"{op} {rr(src[0], src[1], n)},v{voff},s[{srd}:{srd + 3}],{so} offen" + (f" offset:{imm}" if imm else '') + (' ' + flags if flags else '')
    i = Ins(t, [('v', voff)] + R('s', srd, 4) + parse_regs(so) + R(src[0], src[1], n), [], 'vstore', tag)
    i.note = R(src[0], src[1], n) if n >= 3 else []
    return i


def raw(text, rd=(), wr=(), kind='other', states=1, tag=None):
    return Ins(text, rd, wr, kind, tag, states)


def barrier():
    return Ins('s_barrier', kind='barrier')


def wait_lgkm(n=0):
    return Ins(f'WAITLGKM {n}', kind='wait_lgkm', tag=n)


def wait_tag(tag):
    return Ins(f'WAITTAG {tag}', kind='wait_tag', tag=tag)


def wait_vm(n=0):
    return Ins(f'WAITVM {n}', kind='wait_vm', tag=n)


class Out:
    def __init__(self, verbose=False):
        self.lines = []
        self.pos = 0
        self.ds = []
        self.vm = []
        self.w_mfma = {}
        self.w_mfma_d = {}
        self.w_valu = {}
        self.w_trans = {}
        self.w_vsgpr = {}
        self.w_m0 = -100
        self.r_srcc = {}
        self.st_data = {}
        self.n_nop = 0
        self.counts = {}

    def _emit(self, text, states=1):
        self.lines.append(text)
        self.pos += states

    def _nop(self, n):
        self.n_nop += n
        while n > 0:
            k = min(n, 16)
            self._emit(f's_nop {k - 1}', k)
            n -= k

    def _wait(self, vm=None, lgkm=None):
        parts = []
        if vm is not None:
            parts.append(f'vmcnt({vm})')
        if lgkm is not None:
            parts.append(f'lgkmcnt({lgkm})')
        self._emit('s_waitcnt ' + ' '.join(parts))

    def _drain_ds(self, n):
        if len(self.ds) > n:
            self._wait(lgkm=min(n, 15))
            keep = min(n, 15)
            self.ds = self.ds[len(self.ds) - keep:] if keep else []

    def _drain_vm(self, n):
        if len(self.vm) > n:
            k = min(n, 63)
            self._wait(vm=k)
            self.vm = self.vm[len(self.vm) - k:] if k else []

    def add(self, ins):
        k = ins.kind
        self.counts[k] = self.counts.get(k, 0) + 1
        if k == 'wait_lgkm':
            self._drain_ds(ins.tag)
            return
        if k == 'wait_vm':
            self._drain_vm(ins.tag)
            return
        if k == 'wait_tag':
            last = -1
            for i, (_, t) in enumerate(self.vm):
                if t == ins.tag:
                    last = i
            if last >= 0:
                self._drain_vm(len(self.vm) - 1 - last)
            return
        touched = set(ins.rd) | set(ins.wr)
        need = -1
        for i, d in enumerate(self.ds):
            if d & touched:
                need = i
        if need >= 0:
            self._drain_ds(len(self.ds) - 1 - need)
        need = -1
        for i, (d, _) in enumerate(self.vm):
            if d & touched:
                need = i
        if need >= 0:
            self._drain_vm(len(self.vm) - 1 - need)
        if k in ('vload', 'vstore', 'dma') and len(self.vm) >= 63:
            self._drain_vm(62)
        if k in ('ds_read', 'ds_write') and len(self.ds) >= 15:
            self._drain_ds(14)
        req = 0

        def dist(tbl, regs, d):
            nonlocal req
            for r in regs:
                if r in tbl:
                    gap = self.pos - tbl[r] - 1
                    if gap < d:
                        req = max(req, d - gap)

        if k == 'mfma':
            ab, c, dd = ins.note
            dist(self.w_valu, ab + c, 2)
            dist(self.w_mfma, ab, 12)
            for r in c:
                if r in self.w_mfma and self.w_mfma_d[r] != (c[0], len(c)):
                    dist(self.w_mfma, [r], 10)
            if not c:
                dist(self.w_mfma, dd, 12)
        elif k in ('valu', 'trans', 'permlane', 'readlane', 'vcmp'):
            dist(self.w_mfma, ins.rd + ins.wr, 12)
            dist(self.r_srcc, ins.wr, 7)
            dist(self.st_data, ins.wr, 2)
            if k != 'trans':
                dist(self.w_trans, ins.rd, 1)
            if k == 'permlane':
                dist(self.w_valu, ins.rd, 2)
            if k == 'readlane':
                dist(self.w_valu, ins.rd, 1)
            dist(self.w_vsgpr, [r for r in ins.rd if r[0] in ('s', 'vcc')], 2)
        elif k in ('ds_read', 'ds_write', 'vload', 'vstore', 'dma'):
            dist(self.w_mfma, ins.rd + ins.wr, 12)
            dist(self.st_data, ins.wr, 1)
            if k in ('vload', 'vstore', 'dma'):
                dist(self.w_vsgpr, [r for r in ins.rd if r[0] == 's'], 5)
            if k == 'dma':
                gap = self.pos - self.w_m0 - 1
                if gap < 1:
                    req = max(req, 1 - gap)
        elif k == 'salu':
            dist(self.w_vsgpr, [r for r in ins.rd if r[0] in ('s', 'vcc')], 4)
        if req:
            self._nop(req)
        p = self.pos
        self._emit(ins.text, ins.states)
        if k == 'mfma':
            ab, c, dd = ins.note
            for r in dd:
                self.w_mfma[r] = p
                self.w_mfma_d[r] = (dd[0], len(dd))
                self.w_valu.pop(r, None)
            for r in c:
                self.r_srcc[r] = p
        elif k in ('valu', 'trans', 'permlane', 'readlane', 'vcmp'):
            for r in ins.wr:
                if r[0] in ('s', 'vcc'):
                    self.w_vsgpr[r] = p
                else:
                    self.w_valu[r] = p
                    self.w_mfma.pop(r, None)
                    if k == 'trans':
                        self.w_trans[r] = p
                    else:
                        self.w_trans.pop(r, None)
        elif k == 'salu':
            for r in ins.wr:
                if r == ('m0', 0):
                    self.w_m0 = p
                self.w_vsgpr.pop(r, None)
        if k == 'ds_read':
            self.ds.append(set(ins.wr))
            for r in ins.wr:
                self.w_mfma.pop(r, None)
                self.w_valu.pop(r, None)
        elif k == 'ds_write':
            self.ds.append(set())
        elif k == 'vload':
            self.vm.append((set(ins.wr), ins.tag))
            for r in ins.wr:
                self.w_mfma.pop(r, None)
                self.w_valu.pop(r, None)
        elif k == 'dma':
            self.vm.append((set(), ins.tag))
        elif k == 'vstore':
            self.vm.append((set(), ins.tag))
            for r in ins.note:
                self.st_data[r] = p

    def label(self, name):
        self.lines.append(name + ':')

    def text(self):
        return '\n'.join(self.lines)
```

```python
import sys
from emit import *

KN1 = "standalone__mha_block_cached__near_ridge_kernel"
KN2 = "mha_reduce_kernel"

CFG = dict(
    kv_flags='nt',
    w_flags='',
    p_st_flags='',
    p_ld_flags='',
    stamps=False,
    dbg=None,
    code_pf=True,
    w_pf=True,
    kpace=28,
)

REG = 16384
NF = 8
LA = 6
BG = 12

S_X, S_K, S_V, S_WQ, S_WO, S_P = 20, 24, 28, 32, 36, 40
S_WAVE, S_RW = 44, 45
S_C = 46
S_OFF = 48
S_M0B = 49
S_OK, S_OV, S_OWQ, S_OWO = 50, 51, 52, 53
S_T = 54
S_OFF2 = 60
S_ST = 64

V_LANE = 192
V_KA = 193
V_WQA = 193
V_VA = 201
V_WOA = 205
V_DMA = 208
V_DMB = 216
V_KW = 220
V_ST = 221
V_MX = 222
V_MC = 224
V_L = 226
V_RL = 230
V_T = 232

A_X = 0
A_KP = 112
A_QF = 0
A_S = 64
A_RING = 224

V_QACC = 64
V_OACC = 128

XBASE = 3 * REG

NSTEP = 60
ST_Q, ST_K, ST_V0, ST_O0, ST_V1, ST_O1 = 0, 14, 30, 38, 45, 53


def s_tile(t):
    return ('v', 16 * t) if t < 12 else ('a', A_S + 16 * (t - 12))


def sreg_region(sig):
    if sig < 3:
        return [2, 0, 1][sig]
    return 3 + (sig - 3) % 7


def wq_region(s):
    return s % 3


def wo_region(w):
    return [2, 0, 1][w % 3]


class Prog:
    def __init__(self, role, cfg):
        self.role = role
        self.cfg = cfg
        self.gaps = [[] for _ in range(NSTEP * 16 + 1)]
        self.mf = [None] * (NSTEP * 16)
        self.pre = []
        self.post = []
        self.nstamp = 0

    def at(self, g, *ins):
        self.gaps[g].extend(ins)

    def stamp(self):
        if not self.cfg['stamps']:
            return []
        i = self.nstamp
        self.nstamp += 1
        assert i < 18
        return [raw(f's_memtime s[{S_ST + 2 * i}:{S_ST + 2 * i + 1}]', kind='other')]


def dma_group(region, half, soff_base, soff_const, voffs, srd, flags, tag):
    out = [salu(f's_add_u32 m0,s{S_M0B},{region * REG + half * 4096}'),
           salu(f's_add_u32 s{S_OFF},s{soff_base},{soff_const}')]
    for i in range(4):
        out.append(dma(voffs[i], srd, f's{S_OFF}', i * 1024, flags, tag))
    return out


def slot_dma(kind, idx, cfg):
    gs = []
    for half in range(2):
        if kind == 'K':
            gs.append(dma_group(sreg_region(idx), half, S_OK, idx * 16384 + half * 4096,
                                [V_DMA + 4 * half + i for i in range(4)], S_K, cfg['kv_flags'], ('S', idx)))
        elif kind == 'V':
            c, j = divmod(idx - 16, 8)
            gs.append(dma_group(sreg_region(idx), half, S_OV, j * 32768 + c * 256 + half * 8192,
                                [V_DMB + i for i in range(4)], S_V, cfg['kv_flags'], ('S', idx)))
        elif kind == 'WQ':
            gs.append(dma_group(wq_region(idx), half, S_OWQ, idx * 262144 + half * 65536,
                                [V_DMA + i for i in range(4)], S_WQ, cfg['w_flags'], ('WQ', idx)))
        elif kind == 'WO':
            c, j = divmod(idx, 7)
            gs.append(dma_group(wo_region(idx), half, S_OWO, (128 * c + 32 * half) * 896 + j * 128,
                                [V_DMB + i for i in range(4)], S_WO, cfg['w_flags'], ('WO', idx)))
    return gs


def spread_dma(p, groups, g0, stride):
    g = g0
    for grp in groups:
        p.at(g, grp[0], grp[1], grp[2])
        g += stride
        for d in grp[3:]:
            p.at(g, d)
            g += stride
    return g


def prologue_common(cfg):
    o = []
    o.append(raw('s_load_dwordx16 s[4:19],s[0:1],0', wr=R('s', 4, 16)))
    o.append(valu(f'v_and_b32 v{V_LANE},63,v0'))
    o.append(valu(f'v_lshrrev_b32 v{V_T},6,v0'))
    o.append(valu(f'v_readfirstlane_b32 s{S_WAVE},v{V_T}'))
    o.append(salu(f's_and_b32 s{S_T},s2,7'))
    o.append(salu(f's_lshr_b32 s{S_T + 1},s2,3'))
    o.append(salu(f's_lshl_b32 s{S_T},s{S_T},1'))
    o.append(salu(f's_and_b32 s{S_T + 2},s{S_T + 1},1'))
    o.append(salu(f's_add_u32 s{S_T},s{S_T},s{S_T + 2}'))
    o.append(salu(f's_lshr_b32 s{S_T + 1},s{S_T + 1},1'))
    o.append(salu(f's_and_b32 s{S_RW},s{S_WAVE},1'))
    o.append(salu(f's_lshl_b32 s{S_M0B},s{S_RW},13'))
    o.append(salu(f's_mov_b32 s{S_C},0x3db8aa3b'))
    o.append(salu(f's_mov_b32 s{S_C + 1},0x3db8aa3b'))
    o.append(salu(f's_lshl_b32 s{S_T + 3},s{S_T + 1},4'))
    o.append(salu(f's_add_u32 s{S_T + 3},s{S_T + 3},s{S_T}'))
    o.append(raw('s_waitcnt lgkmcnt(0)'))
    H, B, BH, T = S_T, S_T + 1, S_T + 3, S_T + 4
    o.append(salu(f's_lshl_b32 s{T},s{BH},18'))
    o.append(salu(f's_add_u32 s{S_K},s6,s{T}'))
    o.append(salu(f's_addc_u32 s{S_K + 1},s7,0'))
    o.append(salu(f's_mov_b32 s{S_K + 2},0x40000'))
    o.append(salu(f's_mov_b32 s{S_K + 3},0x20000'))
    o.append(salu(f's_add_u32 s{S_V},s8,s{T}'))
    o.append(salu(f's_addc_u32 s{S_V + 1},s9,0'))
    o.append(salu(f's_mov_b32 s{S_V + 2},0x40000'))
    o.append(salu(f's_mov_b32 s{S_V + 3},0x20000'))
    o.append(salu(f's_mul_i32 s{T},s{B},100352'))
    o.append(salu(f's_add_u32 s{S_X},s4,s{T}'))
    o.append(salu(f's_addc_u32 s{S_X + 1},s5,0'))
    o.append(salu(f's_sub_u32 s{S_X},s{S_X},384'))
    o.append(salu(f's_subb_u32 s{S_X + 1},s{S_X + 1},0'))
    o.append(salu(f's_mov_b32 s{S_X + 2},{100352 + 384}'))
    o.append(salu(f's_mov_b32 s{S_X + 3},0x20000'))
    o.append(salu(f's_lshl_b32 s{T},s{H},9'))
    o.append(salu(f's_add_u32 s{S_WQ},s10,s{T}'))
    o.append(salu(f's_addc_u32 s{S_WQ + 1},s11,0'))
    o.append(salu(f's_sub_u32 s{S_WQ + 2},{448 * 8192},s{T}'))
    o.append(salu(f's_mov_b32 s{S_WQ + 3},0x20000'))
    o.append(salu(f's_mul_i32 s{T},s{H},{256 * 896}'))
    o.append(salu(f's_add_u32 s{S_WO},s12,s{T}'))
    o.append(salu(f's_addc_u32 s{S_WO + 1},s13,0'))
    o.append(salu(f's_mov_b32 s{S_WO + 2},{256 * 896}'))
    o.append(salu(f's_mov_b32 s{S_WO + 3},0x20000'))
    o.append(salu(f's_mul_i32 s{T},s{BH},114688'))
    o.append(salu(f's_add_u32 s{S_P},s18,s{T}'))
    o.append(salu(f's_addc_u32 s{S_P + 1},s19,0'))
    o.append(salu(f's_mov_b32 s{S_P + 2},114688'))
    o.append(salu(f's_mov_b32 s{S_P + 3},0x20000'))
    o.append(salu(f's_lshl_b32 s{S_OK},s{S_RW},13'))
    o.append(salu(f's_lshl_b32 s{S_OV},s{S_RW},14'))
    o.append(salu(f's_lshl_b32 s{S_OWQ},s{S_RW},17'))
    o.append(salu(f's_mul_i32 s{S_OWO},s{S_RW},{64 * 896}'))
    return o


def lane_consts(o):
    L, T = V_LANE, V_T
    o.append(valu(f'v_and_b32 v{T},31,v{L}'))
    o.append(valu(f'v_lshrrev_b32 v{T + 1},5,v{L}'))


def read_addr_setup(o):
    L, T = V_LANE, V_T
    o.append(valu(f'v_bfe_u32 v{T + 2},v{L},2,2'))
    o.append(valu(f'v_and_b32 v{T + 3},3,v{L}'))
    o.append(valu(f'v_bfe_u32 v{T + 4},v{L},4,1'))
    o.append(valu(f'v_lshl_add_u32 v{T + 5},v{T + 1},3,v{T + 2}'))
    o.append(valu(f'v_lshlrev_b32 v{T + 5},9,v{T + 5}'))
    o.append(valu(f'v_lshl_add_u32 v{T + 5},v{T + 4},5,v{T + 5}'))
    o.append(valu(f'v_and_b32 v{T + 6},1,v{T + 3}'))
    o.append(valu(f'v_lshl_add_u32 v{T + 5},v{T + 6},4,v{T + 5}'))
    o.append(valu(f'v_lshrrev_b32 v{T + 6},1,v{T + 3}'))
    o.append(valu(f'v_lshl_add_u32 v{T + 5},v{T + 6},3,v{T + 5}'))
    for t0 in range(4):
        o.append(valu(f'v_xor_b32 v{T + 6},{t0},v{T + 2}'))
        o.append(valu(f'v_lshl_add_u32 v{V_WQA + t0},v{T + 6},6,v{T + 5}'))
    o.append(valu(f'v_lshl_add_u32 v{T + 5},v{T + 1},2,v{T + 2}'))
    o.append(valu(f'v_lshlrev_b32 v{T + 7},8,v{T + 5}'))
    o.append(valu(f'v_lshl_add_u32 v{T + 7},v{T + 4},5,v{T + 7}'))
    o.append(valu(f'v_lshl_add_u32 v{T + 7},v{T + 3},3,v{T + 7}'))
    for dt in range(4):
        o.append(valu(f'v_xor_b32 v{T + 6},{dt},v{T + 2}'))
        o.append(valu(f'v_lshl_add_u32 v{V_VA + dt},v{T + 6},6,v{T + 7}'))
    o.append(valu(f'v_lshlrev_b32 v{T + 7},7,v{T + 5}'))
    o.append(valu(f'v_lshl_add_u32 v{T + 7},v{T + 4},5,v{T + 7}'))
    o.append(valu(f'v_lshl_add_u32 v{T + 7},v{T + 3},3,v{T + 7}'))
    o.append(valu(f'v_lshrrev_b32 v{T + 8},1,v{T + 2}'))
    for a in range(2):
        o.append(valu(f'v_xor_b32 v{T + 6},{a},v{T + 8}'))
        o.append(valu(f'v_lshl_add_u32 v{V_WOA + a},v{T + 6},6,v{T + 7}'))
    o.append(salu(f's_mul_i32 s{S_T + 4},s{S_WAVE},28672'))
    o.append(valu(f'v_lshlrev_b32 v{V_ST},4,v{L}'))
    o.append(valu(f'v_add_u32 v{V_ST},s{S_T + 4},v{V_ST}'))
    o.append(salu(f's_lshl_b32 s{S_T + 4},s{S_WAVE},5'))
    o.append(valu(f'v_add_u32 v{T + 6},s{S_T + 4},v{T}'))
    o.append(valu(f'v_cmp_gt_u32 vcc,112,v{T + 6}', extra_wr=[('vcc', 0)]))
    o.append(valu(f'v_mov_b32 v{T + 7},0x7ff00000'))
    o.append(valu(f'v_cndmask_b32 v{V_ST},v{T + 7},v{V_ST},vcc', extra_rd=[('vcc', 0)]))


def kaddr_setup():
    L, T = V_LANE, V_T
    o = []
    o.append(valu(f'v_and_b32 v{T},31,v{L}'))
    o.append(valu(f'v_lshrrev_b32 v{T + 1},5,v{L}'))
    o.append(valu(f'v_and_b32 v{T + 2},15,v{L}'))
    o.append(valu(f'v_xor_b32 v{T + 2},v{T + 2},v{T + 1}'))
    o.append(valu(f'v_lshlrev_b32 v{T + 2},4,v{T + 2}'))
    o.append(valu(f'v_lshl_add_u32 v{T + 2},v{T},9,v{T + 2}'))
    for ks in range(8):
        o.append(valu(f'v_xor_b32 v{V_KA + ks},{ks << 5},v{T + 2}'))
    return o


def x_row_dma(cfg):
    L = V_LANE
    o = []
    o.append(valu(f'v_lshlrev_b32 v16,4,v{L}'))
    o.append(salu(f's_mul_i32 s{S_T + 4},s{S_WAVE},{32 * 896}'))
    o.append(salu(f's_lshl_b32 s{S_T + 5},s{S_WAVE},15'))
    for i in range(16):
        o.append(valu(f'v_xor_b32 v{i},{i << 4},v16'))
        k = 384 - 128 * (i & 3)
        if k:
            o.append(valu(f'v_add_u32 v{i},{k},v{i}'))
        if i % 4 == 3:
            a = i // 4
            o.append(salu(f's_add_u32 m0,s{S_T + 5},{XBASE + a * 4096}'))
            o.append(salu(f's_add_u32 s{S_OFF},s{S_T + 4},{a * 4 * 896}'))
            for e in range(4):
                o.append(dma(4 * a + e, S_X, f's{S_OFF}', e * 1024, cfg['w_flags'], 'X'))
    tail = []
    for a in range(4, 8):
        tail.append(salu(f's_add_u32 m0,s{S_T + 5},{XBASE + a * 4096}'))
        tail.append(salu(f's_add_u32 s{S_OFF},s{S_T + 4},{a * 4 * 896}'))
        for e in range(4):
            tail.append(dma((4 * a + e) & 15, S_X, f's{S_OFF}', e * 1024, cfg['w_flags'], 'X'))
    return o, tail


def prologue_S(p):
    cfg = p.cfg
    o = p.pre
    L, T = V_LANE, V_T
    a_, b_ = x_row_dma(cfg)
    o.extend(a_)
    o.extend(b_)
    lane_consts(o)
    for i in range(8):
        o.append(valu(f'v_add_u32 v{T + 2},{2 * i},v{T + 1}'))
        o.append(valu(f'v_xor_b32 v{T + 2},v{T + 2},v{T}'))
        o.append(valu(f'v_lshlrev_b32 v{T + 2},4,v{T + 2}'))
        o.append(valu(f'v_lshl_add_u32 v{V_DMA + i},v{T + 1},9,v{T + 2}'))
    for sig in range(3):
        for half in range(2):
            o.append(salu(f's_add_u32 s{S_OFF},s{S_OK},{sig * 16384 + half * 4096}'))
            for i in range(4):
                o.append(buf_load(('a', A_KP + 32 * sig + 16 * half + 4 * i), 4, V_DMA + 4 * half + i, S_K,
                                  f's{S_OFF}', i * 1024, cfg['kv_flags'], ('KREG', sig)))
    if cfg['code_pf']:
        o.append(raw(f's_getpc_b64 s[{S_T + 4}:{S_T + 5}]', wr=R('s', S_T + 4, 2), kind='salu'))
        o.append(salu(f's_and_b32 s{S_T + 4},s{S_T + 4},0xffffff00'))
        o.append(salu(f's_lshr_b32 s{S_T + 2},s2,3'))
        o.append(salu(f's_lshl_b32 s{S_T + 2},s{S_T + 2},1'))
        o.append(salu(f's_add_u32 s{S_T + 2},s{S_T + 2},s{S_RW}'))
        o.append(salu(f's_min_u32 s{S_T + 2},s{S_T + 2},CODE_SLICES-1'))
        o.append(salu(f's_lshl_b32 s{S_T + 2},s{S_T + 2},12'))
        o.append(valu(f'v_lshlrev_b32 v{T + 2},6,v{L}'))
        o.append(valu(f'v_add_u32 v{T + 2},s{S_T + 2},v{T + 2}'))
        o.append(Ins(f'global_load_dword v18,v{T + 2},s[{S_T + 4}:{S_T + 5}]',
                     [('v', T + 2)] + R('s', S_T + 4, 2), [('v', 18)], 'vload', 'PF'))
    o.append(valu(f'v_lshrrev_b32 v{T + 4},4,v{L}'))
    o.append(valu(f'v_and_b32 v{T + 5},15,v{L}'))
    o.append(valu(f'v_lshlrev_b32 v{T + 6},2,v{T + 4}'))
    o.append(valu(f'v_xor_b32 v{T + 5},v{T + 5},v{T + 6}'))
    o.append(valu(f'v_lshlrev_b32 v{T + 5},4,v{T + 5}'))
    o.append(valu(f'v_lshl_add_u32 v{V_DMB},v{T + 4},9,v{T + 5}'))
    for i in range(1, 4):
        o.append(valu(f'v_add_u32 v{V_DMB + i},{1024 * i},v{V_DMB}'))
    o.append(valu(f'v_lshlrev_b32 v{V_KW},4,v{L}'))
    o.append(valu(f'v_add_u32 v{V_KW},s{S_M0B},v{V_KW}'))
    read_addr_setup(o)


def prologue_W(p):
    cfg = p.cfg
    o = p.pre
    L, T = V_LANE, V_T
    a_, b_ = x_row_dma(cfg)
    o.extend(a_)
    o.append(salu(f's_cmp_eq_u32 s{S_WAVE},3'))
    o.append(raw('s_cbranch_scc1 L_w3skip', kind='salu'))
    o.extend(b_)
    o.append(raw('L_w3skip:', states=0))
    lane_consts(o)
    for i in range(4):
        o.append(valu(f'v_add_u32 v{T + 2},{2 * (i & 1)},v{T + 1}'))
        o.append(valu(f'v_lshlrev_b32 v{T + 2},2,v{T + 2}'))
        o.append(valu(f'v_xor_b32 v{T + 2},v{T + 2},v{T}'))
        o.append(valu(f'v_lshlrev_b32 v{T + 2},4,v{T + 2}'))
        o.append(valu(f'v_lshl_add_u32 v{T + 2},v{T + 1},13,v{T + 2}'))
        o.append(valu(f'v_add_u32 v{V_DMA + i},{2 * i * 8192 - i * 1024},v{T + 2}'))
    for grp in slot_dma('WQ', 0, cfg):
        o.extend(grp)
    if cfg['w_pf']:
        B = S_T + 1
        o.append(valu(f'v_lshrrev_b32 v{T + 2},2,v{L}'))
        o.append(valu(f'v_and_b32 v{T + 3},3,v{L}'))
        o.append(valu(f'v_lshlrev_b32 v{T + 3},7,v{T + 3}'))
        o.append(valu(f'v_lshl_add_u32 v{T + 2},v{T + 2},13,v{T + 3}'))
        o.append(salu(f's_mul_i32 s{S_T + 4},s{B},{28 * 8192}'))
        o.append(salu(f's_mul_i32 s{S_T + 5},s{S_RW},{14 * 8192}'))
        o.append(salu(f's_add_u32 s{S_T + 4},s{S_T + 4},s{S_T + 5}'))
        o.append(buf_load(('v', 18), 1, T + 2, S_WQ, f's{S_T + 4}', 0, '', 'PF'))
        o.append(valu(f'v_lshlrev_b32 v{T + 2},7,v{L}'))
        o.append(salu(f's_mul_i32 s{S_T + 4},s{B},14336'))
        o.append(salu(f's_mul_i32 s{S_T + 5},s{S_RW},7168'))
        o.append(salu(f's_add_u32 s{S_T + 4},s{S_T + 4},s{S_T + 5}'))
        o.append(buf_load(('v', 19), 1, T + 2, S_WO, f's{S_T + 4}', 0, '', 'PF'))
    o.append(valu(f'v_lshrrev_b32 v{T + 6},3,v{L}'))
    o.append(valu(f'v_mul_u32_u24 v{T + 6},896,v{T + 6}'))
    o.append(valu(f'v_bfe_u32 v{T + 7},v{L},4,1'))
    o.append(valu(f'v_lshlrev_b32 v{T + 7},2,v{T + 7}'))
    o.append(valu(f'v_and_b32 v{T + 8},7,v{L}'))
    o.append(valu(f'v_xor_b32 v{T + 7},v{T + 7},v{T + 8}'))
    o.append(valu(f'v_lshl_add_u32 v{V_DMB},v{T + 7},4,v{T + 6}'))
    for i in range(1, 4):
        o.append(valu(f'v_add_u32 v{V_DMB + i},{6144 * i},v{V_DMB}'))
    read_addr_setup(o)
    o.append(wait_tag(('WQ', 0)))


def x_frag_reads(p):
    L, T = V_LANE, V_T
    o = []
    o.append(salu(f's_cmp_eq_u32 s{S_WAVE},3'))
    o.append(salu(f's_cselect_b32 s{S_T + 4},15,31', extra_rd=[('scc', 0)]))
    o.append(valu(f'v_and_b32 v{T},s{S_T + 4},v{L}'))
    o.append(salu(f's_lshl_b32 s{S_T + 5},s{S_WAVE},15'))
    o.append(salu(f's_add_u32 s{S_T + 5},s{S_T + 5},{XBASE}'))
    o.append(valu(f'v_lshrrev_b32 v{T + 1},5,v{L}'))
    o.append(valu(f'v_and_b32 v{T + 2},15,v{T}'))
    o.append(valu(f'v_xor_b32 v{T + 2},v{T + 2},v{T + 1}'))
    o.append(valu(f'v_lshlrev_b32 v{T + 2},4,v{T + 2}'))
    o.append(valu(f'v_lshl_add_u32 v{T + 2},v{T},10,v{T + 2}'))
    o.append(valu(f'v_add_u32 v{T + 2},s{S_T + 5},v{T + 2}'))
    for k in range(8):
        o.append(valu(f'v_xor_b32 v{T + 3 + k},{k << 5},v{T + 2}'))
    return o, [ds_read('ds_read_b128', ('a', A_X + 4 * ks), 4, T + 3 + (ks & 7), (ks >> 3) * 256) for ks in range(28)]


class Seg:
    def __init__(self, regs):
        self.regs = regs
        self.seg = 0

    def move(self, seg):
        if seg == self.seg:
            return []
        d = (seg - self.seg) * 65536
        self.seg = seg
        return [valu(f'v_add_u32 v{r},{d & 0xffffffff:#x},v{r}') for r in self.regs]


def frag_reads(step, i):
    g = step * 16 + i
    dst = A_RING + 4 * (g % NF)
    if step < ST_K:
        ks, t = divmod(i, 8)
        base = wq_region(step) * REG + ks * 8192 + (t >> 2) * 256
        return [ds_read('ds_read_b64_tr_b16', ('a', dst + 2 * pp), 2, V_WQA + (t & 3), base + pp * 2048) for pp in range(2)]
    if step < ST_V0:
        j = step - ST_K
        off = sreg_region(j) * REG
        return [ds_read('ds_read_b128', ('a', dst), 4, V_KA + (i & 7), (off & 0xffff) + (i >> 3) * 256)]
    if ST_V0 <= step < ST_O0 or ST_V1 <= step < ST_O1:
        c = 0 if step < ST_O0 else 1
        j = step - (ST_V0 if c == 0 else ST_V1)
        kk, dt = divmod(i, 4)
        off = sreg_region(16 + 8 * c + j) * REG
        return [ds_read('ds_read_b64_tr_b16', ('a', dst + 2 * pp), 2, V_VA + dt, (off & 0xffff) + kk * 4096 + pp * 2048)
                for pp in range(2)]
    c = 0 if step < ST_V1 else 1
    j = step - (ST_O0 if c == 0 else ST_O1)
    ksd, a = divmod(i, 2)
    base = wo_region(7 * c + j) * REG + ksd * 16 * 128
    return [ds_read('ds_read_b64_tr_b16', ('a', dst + 2 * pp), 2, V_WOA + a, base + pp * 1024) for pp in range(2)]


def step_mfma(step, i):
    g = step * 16 + i
    A = ('a', A_RING + 4 * (g % NF))
    if step < ST_K:
        ks, t = divmod(i, 8)
        d = ('v', V_QACC + 16 * t)
        return mfma(d, A, ('a', A_X + 4 * (2 * step + ks)), 0 if (step == 0 and ks == 0) else d)
    if step < ST_V0:
        j = step - ST_K
        d = s_tile(j)
        return mfma(d, A, ('a', A_QF + 4 * i), 0 if i == 0 else d)
    if ST_V0 <= step < ST_O0 or ST_V1 <= step < ST_O1:
        j = step - (ST_V0 if step < ST_O0 else ST_V1)
        kk, dt = divmod(i, 4)
        d = ('v', V_OACC + 16 * dt)
        tile = 2 * j + (kk >> 1)
        return mfma(d, A, ('v', 8 * tile + 4 * (kk & 1)), 0 if (j == 0 and kk == 0) else d)
    c = 0 if step < ST_V1 else 1
    j = step - (ST_O0 if c == 0 else ST_O1)
    ksd, a = divmod(i, 2)
    d = ('a', 16 * (2 * j + a))
    return mfma(d, A, ('v', V_OACC + 4 * ksd), 0 if (c == 0 and ksd == 0) else d)


def step_slot_tag(step):
    if step < ST_K:
        return 'W', ('WQ', step)
    if step < ST_V0:
        return 'S', ('S', step - ST_K)
    if step < ST_O0:
        return 'S', ('S', 16 + step - ST_V0)
    if step < ST_V1:
        return 'W', ('WO', step - ST_O0)
    if step < ST_O1:
        return 'S', ('S', 24 + step - ST_V1)
    return 'W', ('WO', 7 + step - ST_O1)


def step_seg(step):
    role, tag = step_slot_tag(step)
    if tag[0] != 'S':
        return None
    return (sreg_region(tag[1]) * REG) >> 16


def softmax_block(cfg):
    T = V_T
    o = []
    for h in range(2):
        for r in range(8):
            o.append(valu(f'v_accvgpr_read_b32 v{T + r},a{A_S + 48 + 8 * h + r}'))
        for r in range(0, 8, 2):
            o.append(valu(f'v_max3_f32 v{V_MX},v{V_MX},v{T + r},v{T + r + 1}'))
    o.append(valu(f'v_mov_b32 v{T},v{V_MX}'))
    o.append(valu(f'v_permlane32_swap_b32 v{T},v{V_MX}'))
    o.append(valu(f'v_max_f32 v{V_MX},v{V_MX},v{T}'))
    o.append(valu(f'v_mul_f32 v{V_MC},s{S_C},v{V_MX}'))
    for k in range(4):
        o.append(valu(f'v_mov_b32 v{V_L + k},0'))
    for t in range(16):
        if t < 12:
            src = 16 * t
        else:
            src = T
            for r in range(16):
                o.append(valu(f'v_accvgpr_read_b32 v{T + r},a{A_S + 16 * (t - 12) + r}'))
        for r in range(16):
            o.append(valu(f'v_fma_f32 v{src + r},v{src + r},s{S_C},-v{V_MC}'))
        for r in range(16):
            o.append(valu(f'v_exp_f32 v{src + r},v{src + r}'))
        for r in range(16):
            o.append(valu(f'v_add_f32 v{V_L + (r & 3)},v{V_L + (r & 3)},v{src + r}'))
        for j in range(8):
            o.append(valu(f'v_cvt_pk_bf16_f32 v{8 * t + j},v{src + 2 * j},v{src + 2 * j + 1}'))
    o.append(valu(f'v_add_f32 v{V_L},v{V_L},v{V_L + 1}'))
    o.append(valu(f'v_add_f32 v{V_L + 2},v{V_L + 2},v{V_L + 3}'))
    o.append(valu(f'v_add_f32 v{V_L},v{V_L},v{V_L + 2}'))
    o.append(valu(f'v_mov_b32 v{T},v{V_L}'))
    o.append(valu(f'v_permlane32_swap_b32 v{T},v{V_L}'))
    o.append(valu(f'v_add_f32 v{V_L},v{V_L},v{T}'))
    o.append(valu(f'v_rcp_f32 v{V_RL},v{V_L}'))
    return o


def ocvt_block():
    o = []
    for ksd in range(8):
        for r in range(8):
            s = V_OACC + 8 * ksd + r
            o.append(valu(f'v_mul_f32 v{s},v{s},v{V_RL}'))
        for j in range(4):
            s = V_OACC + 8 * ksd + 2 * j
            o.append(valu(f'v_cvt_pk_bf16_f32 v{V_OACC + 4 * ksd + j},v{s},v{s + 1}'))
    return o


def out_tile_epi(cfg, nt, tb):
    o = []
    for r in range(16):
        o.append(valu(f'v_accvgpr_read_b32 v{tb + r},a{16 * nt + r}'))
    for j in range(8):
        o.append(valu(f'v_cvt_pk_bf16_f32 v{tb + j},v{tb + 2 * j},v{tb + 2 * j + 1}'))
    o.append(salu(f's_mov_b32 s{S_OFF2},{nt * 2048}'))
    o.append(buf_store(('v', tb), 4, V_ST, S_P, f's{S_OFF2}', 0, cfg['p_st_flags'], 'ST'))
    o.append(buf_store(('v', tb + 4), 4, V_ST, S_P, f's{S_OFF2}', 1024, cfg['p_st_flags'], 'ST'))
    return o


def dbg_dump(p, regs, slot):
    return []


def build_role(role, cfg):
    p = Prog(role, cfg)
    if role == 'S':
        prologue_S(p)
    else:
        prologue_W(p)
    o = p.pre
    if role == 'S':
        o.append(wait_tag('X'))
    o.extend(p.stamp())
    o.append(barrier())
    setup, reads = x_frag_reads(p)
    o.extend(setup)
    if role == 'W':
        for s in (1, 2):
            for grp in slot_dma('WQ', s, cfg):
                o.extend(grp)
    o.extend(reads)
    for i in range(LA):
        o.extend(frag_reads(0, i))
    o.append(wait_lgkm(2 * LA))
    o.append(barrier())
    o.extend(p.stamp())

    for step in range(NSTEP):
        for i in range(16):
            p.mf[step * 16 + i] = step_mfma(step, i)

    kseg = Seg([V_KA + k for k in range(8)])
    vseg = Seg([V_VA + k for k in range(4)])

    for step in range(NSTEP):
        g0 = step * 16
        nxt = step + 1
        for i in range(16):
            if step == 0 and i < LA:
                continue
            g = g0 + i - LA
            gpub = (step - 1) * 16 + BG
            if step > 0:
                g = max(g, gpub)
            p.reads_at = getattr(p, 'reads_at', {})
            p.reads_at.setdefault(g, []).append((step, i))
    for step in range(NSTEP):
        g0 = step * 16
        gb = g0 + BG
        nxt = step + 1
        for g in range(g0, g0 + 16):
            if g == gb:
                bl = []
                fine = step in p.cfg.get('fine', ())
                if fine:
                    bl.extend(p.stamp())
                if nxt < NSTEP:
                    lrole, tag = step_slot_tag(nxt)
                    if tag[0] == 'S' and tag[1] < 3:
                        pass
                    elif lrole == role:
                        bl.append(wait_tag(tag))
                bl.append(wait_lgkm(0))
                if fine:
                    bl.extend(p.stamp())
                if step in (13, 29, 37, 44, 52) and not p.cfg.get('fine'):
                    bl.extend(p.stamp())
                bl.append(barrier())
                if fine:
                    bl.extend(p.stamp())
                if nxt == ST_K:
                    bl.extend(kaddr_setup())
                if nxt < NSTEP:
                    sg = step_seg(nxt)
                    if sg is not None:
                        bl.extend((kseg if nxt < ST_V0 else vseg).move(sg))
                p.at(g, *bl)
            for (st, i) in p.reads_at.get(g, []):
                p.at(g, *frag_reads(st, i))

    if role == 'S':
        for k in range(7):
            spread_dma(p, slot_dma('K', 3 + k, cfg), k * cfg['kpace'], 2)
        for sig in range(3):
            rel = (11 + sig) * 16 + BG
            g = rel + 1
            p.at(g, wait_tag(('KREG', sig)))
            for i in range(8):
                p.at(g + i, ds_write('ds_write_b128', V_KW, ('a', A_KP + 32 * sig + 4 * i), 4,
                                     sreg_region(sig) * REG + i * 1024))
        for sig in range(3, 25):
            if sig < 16:
                step = ST_K + sig
            elif sig < 24:
                step = ST_V0 + sig - 16
            else:
                step = ST_V1 + sig - 24
            n = sig + 7
            kind = 'K' if n < 16 else 'V'
            spread_dma(p, slot_dma(kind, n, cfg), step * 16 + BG + 1, 2)
    else:
        for s in range(11):
            spread_dma(p, slot_dma('WQ', s + 3, cfg), s * 16 + BG + 1, 1)
        for w in range(3):
            spread_dma(p, slot_dma('WO', w, cfg), (ST_K + w) * 16 + BG + 1, 2)
        for w in range(11):
            step = ST_O0 + w if w < 7 else ST_O1 + (w - 7)
            spread_dma(p, slot_dma('WO', w + 3, cfg), step * 16 + BG + 1, 1)

    T = V_T + 8
    g13 = 13 * 16
    for t in range(8):
        g = g13 + 8 + t + 3
        ins = []
        for j in range(8):
            ins.append(valu(f'v_cvt_pk_bf16_f32 v{T + j},v{V_QACC + 16 * t + 2 * j},v{V_QACC + 16 * t + 2 * j + 1}'))
            ins.append(valu(f'v_accvgpr_write_b32 a{A_QF + 8 * t + j},v{T + j}'))
        g = min(g, ST_K * 16)
        p.at(g, *ins)

    for j in range(15):
        g = (ST_K + j + 1) * 16 + 5
        ins = []
        if j < 12:
            s = 16 * j
            if j == 0:
                ins.append(valu(f'v_max3_f32 v{V_MX},v{s},v{s + 1},v{s + 1}'))
                rng = range(2, 16, 2)
            else:
                rng = range(0, 16, 2)
            for r in rng:
                ins.append(valu(f'v_max3_f32 v{V_MX},v{V_MX},v{s + r},v{s + r + 1}'))
        else:
            for h in range(2):
                for r in range(8):
                    ins.append(valu(f'v_accvgpr_read_b32 v{T + r},a{A_S + 16 * (j - 12) + 8 * h + r}'))
                for r in range(0, 8, 2):
                    ins.append(valu(f'v_max3_f32 v{V_MX},v{V_MX},v{T + r},v{T + r + 1}'))
        for k, x in enumerate(ins):
            p.at(g + min(k, 9), x)

    if not cfg.get('fine'):
        p.at(ST_V0 * 16, *p.stamp())
    p.at(ST_V0 * 16, *softmax_block(cfg))
    if not cfg.get('fine'):
        p.at(ST_V0 * 16, *p.stamp())
    p.at(ST_O0 * 16, *ocvt_block())
    p.at(ST_O1 * 16, *ocvt_block())

    for j in range(7):
        for a in range(2):
            ins = out_tile_epi(cfg, 2 * j + a, V_T + 8 * (a * 0))
            ins = out_tile_epi(cfg, 2 * j + a, 16 * ((2 * j + a) % 4))
            if j < 6:
                g = (ST_O1 + j + 1) * 16 + 2 + 7 * a
                for k, x in enumerate(ins):
                    p.at(g + (k * 7) // len(ins), x)
            else:
                p.post.extend(ins)
    return p


def render_role(p, out):
    for x in p.pre:
        out.add(x)
    for g in range(NSTEP * 16):
        for x in p.gaps[g]:
            out.add(x)
        out.add(p.mf[g])
    for x in p.gaps[NSTEP * 16]:
        out.add(x)
    for x in p.post:
        out.add(x)
    if p.cfg['stamps']:
        for x in p.stamp():
            out.add(x)
        out.add(wait_vm(0))
        for x in p.stamp():
            out.add(x)
        out._emit('s_memrealtime s[62:63]')
        out._emit('s_waitcnt lgkmcnt(0)')
        out._emit('s_lshl_b32 s54,s2,2')
        out._emit(f's_add_u32 s54,s54,s{S_WAVE}')
        out._emit('s_lshl_b32 s54,s54,7')
        out._emit('s_add_u32 s18,s18,s54')
        out._emit('s_addc_u32 s19,s19,0')
        out._emit('s_add_u32 s18,s18,0x8000000')
        out._emit('s_addc_u32 s19,s19,0')
        out._emit('v_mov_b32 v0,0')
        for i in range(p.nstamp):
            out._emit(f'v_mov_b32 v1,s{S_ST + 2 * i}')
            out._emit(f'global_store_dword v0,v1,s[18:19] offset:{4 * i}')
            out._emit('s_nop 1')
        out._emit('v_mov_b32 v1,s62')
        out._emit('global_store_dword v0,v1,s[18:19] offset:124')
        out._emit('v_mov_b32 v1,s61')
        out._emit('global_store_dword v0,v1,s[18:19] offset:120')
    out._emit('s_endpgm')


KD = """.amdhsa_kernel {name}
  .amdhsa_next_free_vgpr {vgpr}
  .amdhsa_next_free_sgpr 102
  .amdhsa_accum_offset {acc}
  .amdhsa_group_segment_fixed_size 0
  .amdhsa_kernarg_size 64
  .amdhsa_user_sgpr_count 2
  .amdhsa_user_sgpr_kernarg_segment_ptr 1
  .amdhsa_system_sgpr_workgroup_id_x 1
  .amdhsa_float_denorm_mode_32 3
.end_amdhsa_kernel
"""


def kernel1(cfg):
    lines = []
    o = Out()
    o._emit('s_cmp_ge_u32 s2,256')
    o._emit('s_cbranch_scc1 L_exit1')
    if cfg['stamps']:
        o._emit('s_memrealtime s[62:63]')
        o._emit('s_waitcnt lgkmcnt(0)')
        o._emit('s_mov_b32 s61,s62')
    for x in prologue_common(cfg):
        o.add(x)
    o._emit(f's_cmp_ge_u32 s{S_WAVE},2')
    o._emit('s_cbranch_scc1 L_roleW')
    import copy
    oS = copy.deepcopy(o)
    render_role(build_role('S', cfg), oS)
    oW = Out()
    oW.pos = 1000
    oW.label('L_roleW')
    render_role(build_role('W', cfg), oW)
    txt = oS.text() + '\n' + oW.text() + '\nL_exit1:\ns_endpgm\n'
    return txt, (oS.counts, oS.n_nop, oW.counts, oW.n_nop)


def kernel2(cfg):
    o = Out()
    o._emit('s_cmp_ge_u32 s2,448')
    o._emit('s_cbranch_scc1 L_exit2')
    o.add(raw('s_load_dwordx2 s[4:5],s[0:1],40', wr=R('s', 4, 2)))
    o.add(raw('s_load_dwordx2 s[6:7],s[0:1],56', wr=R('s', 6, 2)))
    o.add(valu('v_lshrrev_b32 v1,6,v0'))
    o.add(valu('v_readfirstlane_b32 s3,v1'))
    o.add(valu('v_and_b32 v0,63,v0'))
    o.add(salu('s_lshl_b32 s8,s2,2'))
    o.add(salu('s_add_u32 s8,s8,s3'))
    o.add(salu('s_mul_i32 s9,s8,9363'))
    o.add(salu('s_lshr_b32 s9,s9,20'))
    o.add(salu('s_mul_i32 s10,s9,112'))
    o.add(salu('s_sub_u32 s10,s8,s10'))
    o.add(salu('s_mul_i32 s11,s10,9363'))
    o.add(salu('s_lshr_b32 s11,s11,18'))
    o.add(salu('s_mul_i32 s12,s11,28'))
    o.add(salu('s_sub_u32 s12,s10,s12'))
    o.add(raw('s_waitcnt lgkmcnt(0)'))
    o.add(salu(f's_mul_i32 s13,s9,{16 * 114688}'))
    o.add(salu('s_lshl_b32 s14,s10,10'))
    o.add(salu('s_add_u32 s13,s13,s14'))
    o.add(salu('s_add_u32 s16,s6,s13'))
    o.add(salu('s_addc_u32 s17,s7,0'))
    o.add(salu(f's_mov_b32 s18,{15 * 114688 + 1024}'))
    o.add(salu('s_mov_b32 s19,0x20000'))
    o.add(valu('v_lshlrev_b32 v1,4,v0'))
    for h in range(16):
        o.add(salu(f's_mov_b32 s15,{h * 114688}'))
        o.add(buf_load(('v', 16 + 4 * h), 4, 1, 16, 's15', 0, cfg['p_ld_flags']))
    o.add(salu('s_mov_b32 s20,s4'))
    o.add(salu('s_mov_b32 s21,s5'))
    o.add(salu(f's_mov_b32 s22,{16 * 112 * 448 * 2}'))
    o.add(salu('s_mov_b32 s23,0x20000'))
    o.add(valu('v_and_b32 v2,31,v0'))
    o.add(salu('s_lshl_b32 s14,s11,5'))
    o.add(valu('v_add_u32 v2,s14,v2'))
    o.add(valu('v_cmp_gt_u32 vcc,112,v2', extra_wr=[('vcc', 0)]))
    o.add(salu('s_mul_i32 s14,s9,112'))
    o.add(valu('v_add_u32 v2,s14,v2'))
    o.add(valu('v_mul_u32_u24 v2,896,v2'))
    o.add(valu('v_lshrrev_b32 v3,5,v0'))
    o.add(valu('v_lshl_add_u32 v2,v3,4,v2'))
    o.add(salu('s_lshl_b32 s14,s12,5'))
    o.add(valu('v_add_u32 v2,s14,v2'))
    o.add(valu('v_mov_b32 v3,0x7ff00000'))
    o.add(valu('v_cndmask_b32 v2,v3,v2,vcc', extra_rd=[('vcc', 0)]))
    o.add(valu('v_mov_b32 v4,0xffff0000'))
    for h in range(16):
        for j in range(4):
            src = 16 + 4 * h + j
            if h == 0:
                o.add(valu(f'v_lshlrev_b32 v{8 + 2 * j},16,v{src}'))
                o.add(valu(f'v_and_b32 v{9 + 2 * j},v4,v{src}'))
            else:
                o.add(valu(f'v_lshlrev_b32 v{5 + (j & 1)},16,v{src}'))
                o.add(valu(f'v_and_b32 v{src},v4,v{src}'))
                o.add(valu(f'v_add_f32 v{8 + 2 * j},v{8 + 2 * j},v{5 + (j & 1)}'))
                o.add(valu(f'v_add_f32 v{9 + 2 * j},v{9 + 2 * j},v{src}'))
    for j in range(4):
        o.add(valu(f'v_cvt_pk_bf16_f32 v{16 + j},v{8 + 2 * j},v{9 + 2 * j}'))
    o.add(valu('v_permlane32_swap_b32 v16,v18'))
    o.add(valu('v_permlane32_swap_b32 v17,v19'))
    o.add(raw('s_nop 1', states=2))
    o.add(buf_store(('v', 16), 4, 2, 20, '0', 0, ''))
    o._emit('L_exit2:', 0)
    o._emit('s_endpgm')
    return o.text()


HEADER = """; Fused multi-head attention block (Q projection, attention over a K/V cache, output projection)
; @launch kernel={k1} grid=(256,1,1) block=(256,1,1) lds=163840
; @launch kernel={k2} grid=(448,1,1) block=(256,1,1) lds=0
.amdgcn_target "amdgcn-amd-amdhsa--gfx950"
"""


def generate(cfg):
    t1, info = kernel1(cfg)
    t2 = kernel2(cfg)
    s = HEADER.format(k1=KN1, k2=KN2)
    if cfg.get('only') == 1:
        s = '\n'.join(l for l in s.split('\n') if KN2 not in l)
    if cfg.get('only') == 2:
        s = '\n'.join(l for l in s.split('\n') if ('kernel=' + KN1) not in l)
    s += '.text\n'
    s += f'.set CODE_SLICES,(L_code_end-{KN1})/4096\n'
    s += f'.globl {KN1}\n.p2align 8\n.type {KN1},@function\n{KN1}:\n' + t1 + 'L_code_end:\n'
    s += f'.globl {KN2}\n.p2align 8\n.type {KN2},@function\n{KN2}:\n' + t2 + '\n'
    s += '.section .rodata,"a"\n.p2align 6\n'
    s += KD.format(name=KN1, vgpr=512, acc=256)
    s += '.p2align 6\n'
    s += KD.format(name=KN2, vgpr=80, acc=80)
    return s, info


if __name__ == '__main__':
    cfg = dict(CFG)
    outp = sys.argv[1]
    for a in sys.argv[2:]:
        k, v = a.split('=', 1)
        if v in ('True', 'False'):
            v = v == 'True'
        elif v.lstrip('-').isdigit():
            v = int(v)
        if k == 'fine':
            v = tuple(int(t) for t in str(v).split('.'))
        cfg[k] = v
    s, info = generate(cfg)
    open(outp, 'w').write(s)
    print(outp, len(s), 'bytes', info)
```

```python
import re


def R(kind, lo, n=1):
    return [(kind, lo + i) for i in range(n)]


def parse_regs(tok):
    tok = tok.strip()
    neg = tok.lstrip('-')
    m = re.fullmatch(r'([vas])\[(\d+):(\d+)\]', neg)
    if m:
        return R(m.group(1), int(m.group(2)), int(m.group(3)) - int(m.group(2)) + 1)
    m = re.fullmatch(r'([vas])(\d+)', neg)
    if m:
        return [(m.group(1), int(m.group(2)))]
    if neg in ('m0', 'scc'):
        return [(neg, 0)]
    if neg in ('vcc', 'exec'):
        return [(neg, 0)]
    return []


def rr(kind, lo, n):
    return f"{kind}{lo}" if n == 1 else f"{kind}[{lo}:{lo + n - 1}]"


class Ins:
    __slots__ = ('text', 'rd', 'wr', 'kind', 'tag', 'states', 'srcc', 'exactc', 'note')

    def __init__(self, text, rd=(), wr=(), kind='other', tag=None, states=1, srcc=(), note=None):
        self.text = text
        self.rd = list(rd)
        self.wr = list(wr)
        self.kind = kind
        self.tag = tag
        self.states = states
        self.srcc = list(srcc)
        self.note = note


TRANS = ('v_exp_f32', 'v_log_f32', 'v_rcp_f32', 'v_rsq_f32', 'v_sqrt_f32')


def ops(text):
    parts = text.split(None, 1)
    op = parts[0]
    rest = parts[1] if len(parts) > 1 else ''
    toks = [t.strip() for t in rest.split(',')]
    return op, toks


def valu(text, extra_rd=(), extra_wr=()):
    op, toks = ops(text)
    last = toks[-1].split()
    toks[-1] = last[0] if last else ''
    wr = parse_regs(toks[0])
    rd = []
    for t in toks[1:]:
        rd += parse_regs(t)
    kind = 'valu'
    base = op.replace('_e32', '').replace('_e64', '')
    if base in TRANS:
        kind = 'trans'
    if base in ('v_fmac_f32', 'v_dot2c_f32_bf16', 'v_writelane_b32'):
        rd += wr
    if base.startswith('v_permlane32_swap') or base.startswith('v_permlane16_swap'):
        kind = 'permlane'
        rd = parse_regs(toks[0]) + parse_regs(toks[1])
        wr = list(rd)
    if base in ('v_readfirstlane_b32', 'v_readlane_b32'):
        kind = 'readlane'
    if base.startswith('v_cmp'):
        kind = 'vcmp'
    if base == 'v_cndmask_b32' and len(toks) == 4:
        pass
    return Ins(text, rd + list(extra_rd), wr + list(extra_wr), kind)


def salu(text, extra_rd=(), extra_wr=()):
    op, toks = ops(text)
    wr = parse_regs(toks[0]) if toks and toks[0] else []
    rd = []
    for t in toks[1:]:
        rd += parse_regs(t)
    if op.startswith('s_cmp'):
        rd = rd + wr
        wr = [('scc', 0)]
    return Ins(text, rd + list(extra_rd), wr + list(extra_wr), 'salu')


def mfma(d, a, b, c):
    D = R(d[0], d[1], 16)
    A = R(a[0], a[1], 4)
    B = R(b[0], b[1], 4)
    if c == 0:
        ctext = '0'
        C = []
    else:
        ctext = rr(c[0], c[1], 16)
        C = R(c[0], c[1], 16)
    t = f"v_mfma_f32_32x32x16_bf16 {rr(d[0], d[1], 16)},{rr(a[0], a[1], 4)},{rr(b[0], b[1], 4)},{ctext}"
    i = Ins(t, A + B + C, D, 'mfma', srcc=C)
    i.note = (A + B, C, D)
    return i


def ds_read(op, dst, n, addr, off):
    assert 0 <= off < 65536, off
    t = f"{op} {rr(dst[0], dst[1], n)},v{addr}" + (f" offset:{off}" if off else '')
    return Ins(t, [('v', addr)], R(dst[0], dst[1], n), 'ds_read')


def ds_write(op, addr, src, n, off):
    assert 0 <= off < 65536, off
    t = f"{op} v{addr},{rr(src[0], src[1], n)}" + (f" offset:{off}" if off else '')
    return Ins(t, [('v', addr)] + R(src[0], src[1], n), [], 'ds_write')


def buf_load(dst, n, voff, srd, soff, imm=0, flags='', tag=None):
    op = {1: 'buffer_load_dword', 2: 'buffer_load_dwordx2', 4: 'buffer_load_dwordx4'}[n]
    assert 0 <= imm < 4096
    so = soff if isinstance(soff, str) else str(soff)
    t = f"{op} {rr(dst[0], dst[1], n)},v{voff},s[{srd}:{srd + 3}],{so} offen" + (f" offset:{imm}" if imm else '') + (' ' + flags if flags else '')
    return Ins(t, [('v', voff)] + R('s', srd, 4) + parse_regs(so), R(dst[0], dst[1], n), 'vload', tag)


def dma(voff, srd, soff, imm=0, flags='', tag=None):
    assert 0 <= imm < 4096
    so = soff if isinstance(soff, str) else str(soff)
    t = f"buffer_load_dwordx4 v{voff},s[{srd}:{srd + 3}],{so} offen" + (f" offset:{imm}" if imm else '') + (' ' + flags if flags else '') + ' lds'
    return Ins(t, [('v', voff), ('m0', 0)] + R('s', srd, 4) + parse_regs(so), [], 'dma', tag)


def buf_store(src, n, voff, srd, soff, imm=0, flags='', tag=None):
    op = {1: 'buffer_store_dword', 2: 'buffer_store_dwordx2', 4: 'buffer_store_dwordx4'}[n]
    assert 0 <= imm < 4096
    so = soff if isinstance(soff, str) else str(soff)
    t = f"{op} {rr(src[0], src[1], n)},v{voff},s[{srd}:{srd + 3}],{so} offen" + (f" offset:{imm}" if imm else '') + (' ' + flags if flags else '')
    i = Ins(t, [('v', voff)] + R('s', srd, 4) + parse_regs(so) + R(src[0], src[1], n), [], 'vstore', tag)
    i.note = R(src[0], src[1], n) if n >= 3 else []
    return i


def raw(text, rd=(), wr=(), kind='other', states=1, tag=None):
    return Ins(text, rd, wr, kind, tag, states)


def barrier():
    return Ins('s_barrier', kind='barrier')


def wait_lgkm(n=0):
    return Ins(f'WAITLGKM {n}', kind='wait_lgkm', tag=n)


def wait_tag(tag):
    return Ins(f'WAITTAG {tag}', kind='wait_tag', tag=tag)


def wait_regs(regs):
    return Ins('WAITREGS', rd=list(regs), kind='wait_regs')


def wait_vm(n=0):
    return Ins(f'WAITVM {n}', kind='wait_vm', tag=n)


class Out:
    def __init__(self, verbose=False):
        self.lines = []
        self.pos = 0
        self.ds = []
        self.vm = []
        self.w_mfma = {}
        self.w_mfma_d = {}
        self.w_valu = {}
        self.w_trans = {}
        self.w_vsgpr = {}
        self.w_m0 = -100
        self.r_srcc = {}
        self.st_data = {}
        self.n_nop = 0
        self.counts = {}

    def _emit(self, text, states=1):
        self.lines.append(text)
        self.pos += states

    def _nop(self, n):
        self.n_nop += n
        while n > 0:
            k = min(n, 16)
            self._emit(f's_nop {k - 1}', k)
            n -= k

    def _wait(self, vm=None, lgkm=None):
        parts = []
        if vm is not None:
            parts.append(f'vmcnt({vm})')
        if lgkm is not None:
            parts.append(f'lgkmcnt({lgkm})')
        self._emit('s_waitcnt ' + ' '.join(parts))

    def _drain_ds(self, n):
        if len(self.ds) > n:
            self._wait(lgkm=min(n, 15))
            keep = min(n, 15)
            self.ds = self.ds[len(self.ds) - keep:] if keep else []

    def _drain_vm(self, n):
        if len(self.vm) > n:
            k = min(n, 63)
            self._wait(vm=k)
            self.vm = self.vm[len(self.vm) - k:] if k else []

    def add(self, ins):
        k = ins.kind
        self.counts[k] = self.counts.get(k, 0) + 1
        if k == 'wait_lgkm':
            self._drain_ds(ins.tag)
            return
        if k == 'wait_vm':
            self._drain_vm(ins.tag)
            return
        if k == 'wait_tag':
            last = -1
            for i, (_, t) in enumerate(self.vm):
                if t == ins.tag:
                    last = i
            if last >= 0:
                self._drain_vm(len(self.vm) - 1 - last)
            return
        touched = set(ins.rd) | set(ins.wr)
        if k == 'wait_regs':
            need = -1
            for i, d in enumerate(self.ds):
                if d & touched:
                    need = i
            if need >= 0:
                self._drain_ds(len(self.ds) - 1 - need)
            return
        need = -1
        for i, d in enumerate(self.ds):
            if d & touched:
                need = i
        if need >= 0:
            self._drain_ds(len(self.ds) - 1 - need)
        need = -1
        for i, (d, _) in enumerate(self.vm):
            if d & touched:
                need = i
        if need >= 0:
            self._drain_vm(len(self.vm) - 1 - need)
        if k in ('vload', 'vstore', 'dma') and len(self.vm) >= 63:
            self._drain_vm(62)
        if k in ('ds_read', 'ds_write') and len(self.ds) >= 15:
            self._drain_ds(14)
        req = 0

        def dist(tbl, regs, d):
            nonlocal req
            for r in regs:
                if r in tbl:
                    gap = self.pos - tbl[r] - 1
                    if gap < d:
                        req = max(req, d - gap)

        if k == 'mfma':
            ab, c, dd = ins.note
            dist(self.w_valu, ab + c, 2)
            dist(self.w_mfma, ab, 12)
            for r in c:
                if r in self.w_mfma and self.w_mfma_d[r] != (c[0], len(c)):
                    dist(self.w_mfma, [r], 10)
            if not c:
                dist(self.w_mfma, dd, 12)
        elif k in ('valu', 'trans', 'permlane', 'readlane', 'vcmp'):
            dist(self.w_mfma, ins.rd + ins.wr, 12)
            dist(self.r_srcc, ins.wr, 7)
            dist(self.st_data, ins.wr, 2)
            if k != 'trans':
                dist(self.w_trans, ins.rd, 1)
            if k == 'permlane':
                dist(self.w_valu, ins.rd, 2)
            if k == 'readlane':
                dist(self.w_valu, ins.rd, 1)
            dist(self.w_vsgpr, [r for r in ins.rd if r[0] in ('s', 'vcc')], 2)
        elif k in ('ds_read', 'ds_write', 'vload', 'vstore', 'dma'):
            dist(self.w_mfma, ins.rd + ins.wr, 12)
            dist(self.st_data, ins.wr, 1)
            if k in ('vload', 'vstore', 'dma'):
                dist(self.w_vsgpr, [r for r in ins.rd if r[0] == 's'], 5)
            if k == 'dma':
                gap = self.pos - self.w_m0 - 1
                if gap < 1:
                    req = max(req, 1 - gap)
        elif k == 'salu':
            dist(self.w_vsgpr, [r for r in ins.rd if r[0] in ('s', 'vcc')], 4)
        if req:
            self._nop(req)
        p = self.pos
        self._emit(ins.text, ins.states)
        if k == 'mfma':
            ab, c, dd = ins.note
            for r in dd:
                self.w_mfma[r] = p
                self.w_mfma_d[r] = (dd[0], len(dd))
                self.w_valu.pop(r, None)
            for r in c:
                self.r_srcc[r] = p
        elif k in ('valu', 'trans', 'permlane', 'readlane', 'vcmp'):
            for r in ins.wr:
                if r[0] in ('s', 'vcc'):
                    self.w_vsgpr[r] = p
                else:
                    self.w_valu[r] = p
                    self.w_mfma.pop(r, None)
                    if k == 'trans':
                        self.w_trans[r] = p
                    else:
                        self.w_trans.pop(r, None)
        elif k == 'salu':
            for r in ins.wr:
                if r == ('m0', 0):
                    self.w_m0 = p
                self.w_vsgpr.pop(r, None)
        if k == 'ds_read':
            self.ds.append(set(ins.wr))
            for r in ins.wr:
                self.w_mfma.pop(r, None)
                self.w_valu.pop(r, None)
        elif k == 'ds_write':
            self.ds.append(set())
        elif k == 'vload':
            self.vm.append((set(ins.wr), ins.tag))
            for r in ins.wr:
                self.w_mfma.pop(r, None)
                self.w_valu.pop(r, None)
        elif k == 'dma':
            self.vm.append((set(), ins.tag))
        elif k == 'vstore':
            self.vm.append((set(), ins.tag))
            for r in ins.note:
                self.st_data[r] = p

    def label(self, name):
        self.lines.append(name + ':')

    def text(self):
        return '\n'.join(self.lines)
```

```python
import sys
from emit import *

KN1 = "standalone__mha_block_cached__near_ridge_kernel"
KN2 = "mha_reduce_kernel"

CFG = dict(
    kv_flags='nt', w_flags='', p_st_flags='', p_ld_flags='',
    stamps=False, code_pf=True, w_pf=True, pk=False, zero_pad=True, pairwait=True,
    dstride=3, map=4,
)

REG = 16384
NF = 8
LA = 6
BG = 12

S_X, S_K, S_V, S_WQ, S_WO, S_P = 20, 24, 28, 32, 36, 40
S_WAVE = 44
S_C = 46
S_OFF = 48
S_M0B = 49
S_OK, S_OV, S_OWQ, S_OWO = 50, 51, 52, 53
S_T = 54
S_OFF2 = 60
S_ST = 64

V_P = 0
V_QACC = 0
V_SB = 128
V_KT = 176
V_OACC = 128
V_LANE = 192
V_KA = 193
V_WQA = 193
V_VT = 193
V_VA = 201
V_WOA = 205
V_KW = 207
V_DK, V_DV, V_DW = 208, 212, 216
V_ST = 220
V_MX, V_L, V_RL = 221, 222, 223
V_MT = 224
V_T = 240

A_X = 0
A_KP = 112
A_QF = 0
A_RING = 224

XBASE = 3 * REG
NSTEP = 60
ST_Q, ST_K, ST_V0, ST_O0, ST_V1, ST_O1 = 0, 14, 30, 38, 45, 53


def sbuf(j):
    return V_T if j == 15 else V_SB + 16 * (j % 3)


def consume_step(slot):
    k, n = slot
    if k == 'WQ':
        return n
    if k == 'K':
        return ST_K + n
    if k == 'V':
        return ST_V0 + n - 16 if n < 24 else ST_V1 + n - 24
    return ST_O0 + n if n < 7 else ST_O1 + n - 7


def step_slot(step):
    if step < ST_K:
        return ('WQ', step)
    if step < ST_V0:
        return ('K', step - ST_K)
    if step < ST_O0:
        return ('V', 16 + step - ST_V0)
    if step < ST_V1:
        return ('WO', step - ST_O0)
    if step < ST_O1:
        return ('V', 24 + step - ST_V1)
    return ('WO', 7 + step - ST_O1)


def load_plan(cfg):
    P = []
    P += [('pro', ('WQ', 0), 'lds'), ('pro', ('WQ', 1), 'lds'), ('pro', ('WQ', 2), 'lds'),
          ('pro', ('K', 0), 'reg'), ('pro', ('K', 1), 'reg')]
    P += [('x2', ('WQ', 3), 'lds'), ('x2', ('WQ', 4), 'lds'), ('x2', ('K', 2), 'lds')]
    for s in range(9):
        P.append((s, ('WQ', s + 5), 'lds'))
    P += [(1, ('K', 3), 'lds'), (3, ('K', 4), 'lds'), (5, ('K', 5), 'lds'), (7, ('K', 6), 'lds'),
          (9, ('K', 7), 'lds'), (10, ('K', 0), 'xfer'), (11, ('K', 1), 'xfer'), (12, ('K', 8), 'lds'),
          (13, ('K', 9), 'lds')]
    for j in range(14):
        n = 10 + j
        P.append((ST_K + j, ('K' if n < 16 else 'V', n), 'lds'))
    P += [(28, ('WO', 0), 'lds'), (29, ('WO', 1), 'lds'),
          (30, ('V', 24), 'lds'), (31, ('WO', 2), 'lds'), (32, ('V', 25), 'lds'), (33, ('WO', 3), 'lds'),
          (34, ('V', 26), 'lds'), (35, ('V', 27), 'lds'), (36, ('V', 28), 'lds'), (37, ('V', 29), 'lds'),
          (38, ('WO', 4), 'lds'), (39, ('WO', 5), 'lds'), (40, ('WO', 6), 'lds'), (41, ('V', 30), 'lds'),
          (42, ('V', 31), 'lds'), (43, ('WO', 7), 'lds'), (44, ('WO', 8), 'lds'),
          (45, ('WO', 9), 'lds'), (46, ('WO', 10), 'lds'), (47, ('WO', 11), 'lds'), (48, ('WO', 12), 'lds'),
          (49, ('WO', 13), 'lds')]
    return P


def allocate(plan):
    order = {'pro': -2, 'x2': -1}
    ev = sorted(range(len(plan)), key=lambda i: (order.get(plan[i][0], plan[i][0]), i))
    free = [0, 1, 2]
    region, regbase = {}, {}
    nreg = 0
    cur = -2
    for i in ev:
        when, slot, mode = plan[i]
        w = order.get(when, when)
        while cur < w:
            cur += 1
            if cur == -1:
                free += list(range(3, 10))
            elif cur >= 0:
                free.append(region[step_slot(cur)])
        if mode == 'reg':
            regbase[slot] = A_KP + 16 * nreg
            nreg += 1
        else:
            assert free, ('no free region', when, slot)
            region[slot] = free.pop(0)
        if mode != 'reg':
            c = consume_step(slot)
            assert w < c - 1 or w < 0, ('too late', when, slot)
    return region, regbase


class Seg:
    def __init__(self, regs):
        self.regs, self.seg = regs, 0

    def move(self, seg):
        if seg == self.seg:
            return []
        d = (seg - self.seg) * 65536
        self.seg = seg
        return [valu(f'v_add_u32 v{r},{d & 0xffffffff:#x},v{r}') for r in self.regs]


class Prog:
    def __init__(self, cfg):
        self.cfg = cfg
        self.gaps = [[] for _ in range(NSTEP * 16 + 1)]
        self.mf = [None] * (NSTEP * 16)
        self.pre, self.post = [], []
        self.nstamp = 0
        self.plan = load_plan(cfg)
        self.region, self.regbase = allocate(self.plan)

    def at(self, g, *ins):
        self.gaps[g].extend(ins)

    def spread(self, ins, g0, g1):
        n, m = len(ins), g1 - g0 + 1
        for k, x in enumerate(ins):
            self.at(g0 + (k * m) // n, x)

    def stamp(self):
        if not self.cfg['stamps']:
            return []
        i = self.nstamp
        self.nstamp += 1
        assert i < 18
        return [raw(f's_memtime s[{S_ST + 2 * i}:{S_ST + 2 * i + 1}]')]

    def slot_loads(self, slot, mode):
        cfg = self.cfg
        k, n = slot
        if k == 'K':
            base, const, voff, srd, fl = S_OK, n * 16384, V_DK, S_K, cfg['kv_flags']
        elif k == 'V':
            c, j = divmod(n - 16, 8)
            base, const, voff, srd, fl = S_OV, j * 32768 + c * 256, V_DV, S_V, cfg['kv_flags']
        elif k == 'WQ':
            base, const, voff, srd, fl = S_OWQ, n * 262144, V_DW, S_WQ, cfg['w_flags']
        else:
            c, j = divmod(n, 7)
            base, const, voff, srd, fl = S_OWO, 128 * c * 896 + j * 128, V_DW, S_WO, cfg['w_flags']
        if mode == 'xfer':
            rb = self.regbase[slot]
            off = self.region[slot] * REG
            seg, lo = off >> 16, off & 0xffff
            o = []
            if seg:
                o.append(valu(f'v_add_u32 v{V_KT},{seg << 16:#x},v{V_KW}'))
            a = V_KT if seg else V_KW
            return o + [ds_write('ds_write_b128', a, ('a', rb + 4 * i), 4, lo + i * 1024) for i in range(4)]
        o = [salu(f's_add_u32 s{S_OFF},s{base},{const}')]
        if mode == 'reg':
            rb = self.regbase[slot]
            for i in range(4):
                o.append(buf_load(('a', rb + 4 * i), 4, voff + i, srd, f's{S_OFF}', i * 1024, fl, slot))
        else:
            o.insert(0, salu(f's_add_u32 m0,s{S_M0B},{self.region[slot] * REG}'))
            for i in range(4):
                o.append(dma(voff + i, srd, f's{S_OFF}', i * 1024, fl, slot))
        return o


def prologue(p):
    cfg = p.cfg
    o = p.pre
    L, T = V_LANE, V_T
    H, B, BH, TT = S_T, S_T + 1, S_T + 3, S_T + 4
    o.append(raw('s_load_dwordx16 s[4:19],s[0:1],0', wr=R('s', 4, 16)))
    o.append(valu(f'v_and_b32 v{L},63,v0'))
    o.append(valu(f'v_lshrrev_b32 v{T},6,v0'))
    o.append(valu(f'v_readfirstlane_b32 s{S_WAVE},v{T}'))
    if cfg['code_pf']:
        o.append(raw(f's_getpc_b64 s[{TT}:{TT + 1}]', wr=R('s', TT, 2), kind='salu'))
        o.append(salu(f's_and_b32 s{TT},s{TT},0xffffff00'))
        o.append(salu(f's_lshr_b32 s{S_T + 2},s2,3'))
        o.append(salu(f's_lshl_b32 s{S_T + 2},s{S_T + 2},2'))
        o.append(salu(f's_add_u32 s{S_T + 2},s{S_T + 2},s{S_WAVE}'))
        o.append(salu(f's_min_u32 s{S_T + 2},s{S_T + 2},CODE_SLICES-1'))
        o.append(salu(f's_lshl_b32 s{S_T + 2},s{S_T + 2},10'))
        o.append(valu(f'v_and_b32 v{T + 2},15,v{L}'))
        o.append(valu(f'v_lshlrev_b32 v{T + 2},6,v{T + 2}'))
        o.append(valu(f'v_add_u32 v{T + 2},s{S_T + 2},v{T + 2}'))
        o.append(Ins(f'global_load_dword v147,v{T + 2},s[{TT}:{TT + 1}]',
                     [('v', T + 2)] + R('s', TT, 2), [('v', 147)], 'vload', 'PF'))
    if cfg['map'] == 2:
        o.append(salu(f's_and_b32 s{H},s2,7'))
        o.append(salu(f's_lshr_b32 s{B},s2,3'))
        o.append(salu(f's_lshl_b32 s{H},s{H},1'))
        o.append(salu(f's_and_b32 s{S_T + 2},s{B},1'))
        o.append(salu(f's_add_u32 s{H},s{H},s{S_T + 2}'))
        o.append(salu(f's_lshr_b32 s{B},s{B},1'))
    else:
        o.append(salu(f's_and_b32 s{H},s2,3'))
        o.append(salu(f's_lshl_b32 s{H},s{H},2'))
        o.append(salu(f's_bfe_u32 s{S_T + 2},s2,0x20003'))
        o.append(salu(f's_add_u32 s{H},s{H},s{S_T + 2}'))
        o.append(salu(f's_bfe_u32 s{B},s2,0x10002'))
        o.append(salu(f's_lshl_b32 s{B},s{B},3'))
        o.append(salu(f's_lshr_b32 s{S_T + 2},s2,5'))
        o.append(salu(f's_add_u32 s{B},s{B},s{S_T + 2}'))
    o.append(valu(f'v_lshlrev_b32 v144,4,v{L}'))
    for i in range(16):
        o.append(valu(f'v_xor_b32 v{128 + i},{i << 4},v144'))
        k = 384 - 128 * (i & 3)
        if k:
            o.append(valu(f'v_add_u32 v{128 + i},{k},v{128 + i}'))
    o.append(salu(f's_mul_i32 s{TT},s{B},100352'))
    o.append(salu(f's_mul_i32 s{S_T + 2},s{S_WAVE},{32 * 896}'))
    o.append(salu(f's_lshl_b32 s{S_T + 5},s{S_WAVE},15'))
    o.append(salu(f's_mov_b32 s{S_X + 2},{100352 + 384}'))
    o.append(salu(f's_mov_b32 s{S_X + 3},0x20000'))
    o.append(raw('s_waitcnt lgkmcnt(0)'))
    o.append(salu(f's_add_u32 s{S_X},s4,s{TT}'))
    o.append(salu(f's_addc_u32 s{S_X + 1},s5,0'))
    o.append(salu(f's_sub_u32 s{S_X},s{S_X},384'))
    o.append(salu(f's_subb_u32 s{S_X + 1},s{S_X + 1},0'))

    def xgroup(a):
        r = [salu(f's_add_u32 m0,s{S_T + 5},{XBASE + a * 4096}'),
             salu(f's_add_u32 s{S_OFF},s{S_T + 2},{a * 4 * 896}')]
        for e in range(4):
            r.append(dma(128 + ((4 * a + e) & 15), S_X, f's{S_OFF}', e * 1024, cfg['w_flags'], 'X'))
        return r
    for a in range(4):
        o.extend(xgroup(a))
    o.append(salu(f's_cmp_eq_u32 s{S_WAVE},3'))
    o.append(raw('s_cbranch_scc1 L_w3skip', kind='salu'))
    for a in range(4, 8):
        o.extend(xgroup(a))
    o.append(raw('L_w3skip:', states=0))
    o.append(salu(f's_lshl_b32 s{TT},s{H},9'))
    o.append(salu(f's_add_u32 s{S_WQ},s10,s{TT}'))
    o.append(salu(f's_addc_u32 s{S_WQ + 1},s11,0'))
    o.append(salu(f's_sub_u32 s{S_WQ + 2},{448 * 8192},s{TT}'))
    o.append(salu(f's_mov_b32 s{S_WQ + 3},0x20000'))
    o.append(salu(f's_lshl_b32 s{S_M0B},s{S_WAVE},12'))
    o.append(salu(f's_lshl_b32 s{S_OWQ},s{S_WAVE},16'))
    o.append(valu(f'v_and_b32 v{T},31,v{L}'))
    o.append(valu(f'v_lshrrev_b32 v{T + 1},5,v{L}'))
    for i in range(4):
        o.append(valu(f'v_add_u32 v{T + 2},{2 * (i & 1)},v{T + 1}'))
        o.append(valu(f'v_lshlrev_b32 v{T + 2},2,v{T + 2}'))
        o.append(valu(f'v_xor_b32 v{T + 2},v{T + 2},v{T}'))
        o.append(valu(f'v_lshlrev_b32 v{T + 2},4,v{T + 2}'))
        o.append(valu(f'v_lshl_add_u32 v{T + 2},v{T + 1},13,v{T + 2}'))
        o.append(valu(f'v_add_u32 v{V_DW + i},{2 * i * 8192 - i * 1024},v{T + 2}'))
    pro = [(slot, mode) for when, slot, mode in p.plan if when == 'pro']
    for slot, mode in pro:
        if slot[0] == 'WQ':
            o.extend(p.slot_loads(slot, mode))
    o.append(salu(f's_lshl_b32 s{BH},s{B},4'))
    o.append(salu(f's_add_u32 s{BH},s{BH},s{H}'))
    o.append(salu(f's_lshl_b32 s{TT},s{BH},18'))
    o.append(salu(f's_add_u32 s{S_K},s6,s{TT}'))
    o.append(salu(f's_addc_u32 s{S_K + 1},s7,0'))
    o.append(salu(f's_mov_b32 s{S_K + 2},0x40000'))
    o.append(salu(f's_mov_b32 s{S_K + 3},0x20000'))
    o.append(salu(f's_lshl_b32 s{S_OK},s{S_WAVE},12'))
    o.append(salu(f's_and_b32 s{S_T + 2},s{S_WAVE},1'))
    o.append(salu(f's_lshl_b32 s{S_T + 2},s{S_T + 2},3'))
    o.append(valu(f'v_add_u32 v{T + 3},s{S_T + 2},v{T + 1}'))
    for i in range(4):
        o.append(valu(f'v_add_u32 v{T + 2},{2 * i},v{T + 3}'))
        o.append(valu(f'v_xor_b32 v{T + 2},v{T + 2},v{T}'))
        o.append(valu(f'v_lshlrev_b32 v{T + 2},4,v{T + 2}'))
        o.append(valu(f'v_lshl_add_u32 v{V_DK + i},v{T + 1},9,v{T + 2}'))
    for slot, mode in pro:
        if slot[0] == 'K':
            o.extend(p.slot_loads(slot, mode))
    o.append(salu(f's_add_u32 s{S_V},s8,s{TT}'))
    o.append(salu(f's_addc_u32 s{S_V + 1},s9,0'))
    o.append(salu(f's_mov_b32 s{S_V + 2},0x40000'))
    o.append(salu(f's_mov_b32 s{S_V + 3},0x20000'))
    o.append(salu(f's_lshl_b32 s{S_OV},s{S_WAVE},13'))
    o.append(salu(f's_mul_i32 s{TT},s{H},{256 * 896}'))
    o.append(salu(f's_add_u32 s{S_WO},s12,s{TT}'))
    o.append(salu(f's_addc_u32 s{S_WO + 1},s13,0'))
    o.append(salu(f's_mov_b32 s{S_WO + 2},{256 * 896}'))
    o.append(salu(f's_mov_b32 s{S_WO + 3},0x20000'))
    o.append(salu(f's_mul_i32 s{S_OWO},s{S_WAVE},{32 * 896}'))
    o.append(salu(f's_mul_i32 s{TT},s{BH},114688'))
    o.append(salu(f's_add_u32 s{S_P},s18,s{TT}'))
    o.append(salu(f's_addc_u32 s{S_P + 1},s19,0'))
    o.append(salu(f's_mov_b32 s{S_P + 2},114688'))
    o.append(salu(f's_mov_b32 s{S_P + 3},0x20000'))
    o.append(salu(f's_mov_b32 s{S_C},0x3db8aa3b'))
    o.append(salu(f's_mov_b32 s{S_C + 1},0x3db8aa3b'))
    if cfg['w_pf']:
        nsh = 16 if cfg['map'] == 2 else 8
        rows = 448 // nsh // 4
        o.append(salu(f's_and_b32 s{S_T + 2},s{B},{nsh - 1}'))
        o.append(salu(f's_lshl_b32 s{S_T + 2},s{S_T + 2},2'))
        o.append(salu(f's_add_u32 s{S_T + 2},s{S_T + 2},s{S_WAVE}'))
        o.append(valu(f'v_lshrrev_b32 v{T + 2},2,v{L}'))
        o.append(valu(f'v_and_b32 v{T + 3},3,v{L}'))
        o.append(valu(f'v_lshlrev_b32 v{T + 3},7,v{T + 3}'))
        o.append(valu(f'v_lshl_add_u32 v{T + 2},v{T + 2},13,v{T + 3}'))
        o.append(salu(f's_mul_i32 s{TT},s{S_T + 2},{rows * 8192}'))
        m = (1 << (4 * rows)) - 1
        o.append(raw('s_mov_b32 exec_lo,%#x' % (m & 0xffffffff), wr=[('exec', 0)], kind='salu'))
        o.append(raw('s_mov_b32 exec_hi,%#x' % (m >> 32), wr=[('exec', 0)], kind='salu'))
        o.append(buf_load(('v', 145), 1, T + 2, S_WQ, f's{TT}', 0, '', 'PF'))
        o.append(valu(f'v_lshlrev_b32 v{T + 2},7,v{L}'))
        o.append(salu(f's_mul_i32 s{TT},s{S_T + 2},{rows * 512}'))
        o.append(buf_load(('v', 146), 1, T + 2, S_WO, f's{TT}', 0, '', 'PF'))
        o.append(salu('s_mov_b64 exec,-1'))
    o.append(valu(f'v_lshrrev_b32 v{T + 4},4,v{L}'))
    o.append(valu(f'v_and_b32 v{T + 5},15,v{L}'))
    o.append(valu(f'v_lshlrev_b32 v{T + 6},2,v{T + 4}'))
    o.append(valu(f'v_xor_b32 v{T + 5},v{T + 5},v{T + 6}'))
    o.append(valu(f'v_lshlrev_b32 v{T + 5},4,v{T + 5}'))
    o.append(valu(f'v_lshl_add_u32 v{V_DV},v{T + 4},9,v{T + 5}'))
    for i in range(1, 4):
        o.append(valu(f'v_add_u32 v{V_DV + i},{1024 * i},v{V_DV}'))
    o.append(valu(f'v_add_u32 v{V_KW},s{S_M0B},v144'))
    o.append(valu(f'v_bfe_u32 v{T + 2},v{L},2,2'))
    o.append(valu(f'v_and_b32 v{T + 3},3,v{L}'))
    o.append(valu(f'v_bfe_u32 v{T + 4},v{L},4,1'))
    o.append(valu(f'v_lshl_add_u32 v{T + 5},v{T + 1},3,v{T + 2}'))
    o.append(valu(f'v_lshlrev_b32 v{T + 5},9,v{T + 5}'))
    o.append(valu(f'v_lshl_add_u32 v{T + 5},v{T + 4},5,v{T + 5}'))
    o.append(valu(f'v_and_b32 v{T + 6},1,v{T + 3}'))
    o.append(valu(f'v_lshl_add_u32 v{T + 5},v{T + 6},4,v{T + 5}'))
    o.append(valu(f'v_lshrrev_b32 v{T + 6},1,v{T + 3}'))
    o.append(valu(f'v_lshl_add_u32 v{T + 5},v{T + 6},3,v{T + 5}'))
    for t0 in range(4):
        o.append(valu(f'v_xor_b32 v{T + 6},{t0},v{T + 2}'))
        o.append(valu(f'v_lshl_add_u32 v{V_WQA + t0},v{T + 6},6,v{T + 5}'))
    o.append(valu(f'v_lshl_add_u32 v{T + 5},v{T + 1},2,v{T + 2}'))
    o.append(valu(f'v_lshlrev_b32 v{T + 7},8,v{T + 5}'))
    o.append(valu(f'v_lshl_add_u32 v{T + 7},v{T + 4},5,v{T + 7}'))
    o.append(valu(f'v_lshl_add_u32 v{T + 7},v{T + 3},3,v{T + 7}'))
    for dt in range(4):
        o.append(valu(f'v_xor_b32 v{T + 6},{dt},v{T + 2}'))
        o.append(valu(f'v_lshl_add_u32 v{V_VA + dt},v{T + 6},6,v{T + 7}'))
    o.append(valu(f'v_lshlrev_b32 v{T + 7},7,v{T + 5}'))
    o.append(valu(f'v_lshl_add_u32 v{T + 7},v{T + 4},5,v{T + 7}'))
    o.append(valu(f'v_lshl_add_u32 v{T + 7},v{T + 3},3,v{T + 7}'))
    o.append(valu(f'v_lshrrev_b32 v{T + 8},1,v{T + 2}'))
    for a in range(2):
        o.append(valu(f'v_xor_b32 v{T + 6},{a},v{T + 8}'))
        o.append(valu(f'v_lshl_add_u32 v{V_WOA + a},v{T + 6},6,v{T + 7}'))
    o.append(salu(f's_mul_i32 s{TT},s{S_WAVE},28672'))
    o.append(valu(f'v_add_u32 v{V_ST},s{TT},v144'))
    o.append(salu(f's_lshl_b32 s{TT},s{S_WAVE},5'))
    o.append(valu(f'v_add_u32 v{T + 6},s{TT},v{T}'))
    o.append(valu(f'v_cmp_gt_u32 vcc,112,v{T + 6}'))
    o.append(salu('s_mov_b64 s[62:63],vcc'))
    o.append(valu(f'v_mov_b32 v{T + 7},0x7ff00000'))
    o.append(valu(f'v_cndmask_b32 v{V_ST},v{T + 7},v{V_ST},s[62:63]'))
    o.append(valu(f'v_mov_b32 v{T + 7},0x45800000'))
    o.append(valu(f'v_mov_b32 v{V_MX},0xff800000'))
    if cfg['zero_pad']:
        o.append(valu(f'v_cndmask_b32 v{V_MX},v{T + 7},v{V_MX},s[62:63]'))
    o.append(valu(f'v_mov_b32 v{V_L},0'))
    o.append(valu(f'v_and_b32 v{T + 2},15,v{L}'))
    o.append(valu(f'v_xor_b32 v{T + 2},v{T + 2},v{T + 1}'))
    o.append(valu(f'v_lshlrev_b32 v{T + 2},4,v{T + 2}'))
    o.append(valu(f'v_lshl_add_u32 v{T + 2},v{T},10,v{T + 2}'))
    o.append(salu(f's_lshl_b32 s{TT},s{S_WAVE},15'))
    o.append(salu(f's_add_u32 s{TT},s{TT},{XBASE}'))
    o.append(valu(f'v_add_u32 v{T + 2},s{TT},v{T + 2}'))
    if cfg['zero_pad']:
        o.append(valu(f'v_mov_b32 v{T + 11},0x30000'))
        o.append(valu(f'v_cndmask_b32 v{T + 2},v{T + 11},v{T + 2},s[62:63]'))
    else:
        o.append(valu(f'v_add_u32 v{T + 11},-16384,v{T + 2}'))
        o.append(valu(f'v_cndmask_b32 v{T + 2},v{T + 11},v{T + 2},s[62:63]'))
    for k in range(8):
        o.append(valu(f'v_xor_b32 v{T + 3 + k},{k << 5},v{T + 2}'))
    o.append(wait_tag('X'))
    o.extend(p.stamp())
    for ks in range(28):
        o.append(ds_read('ds_read_b128', ('a', A_X + 4 * ks), 4, T + 3 + (ks & 7), (ks >> 3) * 256))
    o.append(wait_tag(('WQ', 0)))
    o.append(wait_lgkm(0))
    o.append(barrier())
    o.extend(p.stamp())


def kaddr_setup():
    L, T = V_LANE, V_KT
    o = [valu(f'v_and_b32 v{T},31,v{L}'), valu(f'v_lshrrev_b32 v{T + 1},5,v{L}'),
         valu(f'v_and_b32 v{T + 2},15,v{L}'), valu(f'v_xor_b32 v{T + 2},v{T + 2},v{T + 1}'),
         valu(f'v_lshlrev_b32 v{T + 2},4,v{T + 2}'), valu(f'v_lshl_add_u32 v{T + 2},v{T},9,v{T + 2}')]
    for ks in range(8):
        o.append(valu(f'v_xor_b32 v{V_KA + ks},{ks << 5},v{T + 2}'))
    return o


def wo_dma_setup():
    L, T = V_LANE, V_KT + 8
    o = [valu(f'v_lshrrev_b32 v{T},3,v{L}'), valu(f'v_mul_u32_u24 v{T},896,v{T}'),
         valu(f'v_bfe_u32 v{T + 1},v{L},4,1'), valu(f'v_lshlrev_b32 v{T + 1},2,v{T + 1}'),
         valu(f'v_and_b32 v{T + 2},7,v{L}'), valu(f'v_xor_b32 v{T + 1},v{T + 1},v{T + 2}'),
         valu(f'v_lshl_add_u32 v{V_DW},v{T + 1},4,v{T}')]
    for i in range(1, 4):
        o.append(valu(f'v_add_u32 v{V_DW + i},{6144 * i},v{V_DW}'))
    return o


def frag_reads(p, step, i):
    g = step * 16 + i
    dst = A_RING + 4 * (g % NF)
    slot = step_slot(step)
    off = (p.region[slot] * REG) & 0xffff
    k = slot[0]
    if k == 'WQ':
        ks, t = divmod(i, 8)
        base = off + ks * 8192 + (t >> 2) * 256
        return [ds_read('ds_read_b64_tr_b16', ('a', dst + 2 * pp), 2, V_WQA + (t & 3), base + pp * 2048) for pp in range(2)]
    if k == 'K':
        return [ds_read('ds_read_b128', ('a', dst), 4, V_KA + (i & 7), off + (i >> 3) * 256)]
    if k == 'V':
        kk, dt = divmod(i, 4)
        return [ds_read('ds_read_b64_tr_b16', ('a', dst + 2 * pp), 2, V_VA + dt, off + kk * 4096 + pp * 2048) for pp in range(2)]
    ksd, a = divmod(i, 2)
    return [ds_read('ds_read_b64_tr_b16', ('a', dst + 2 * pp), 2, V_WOA + a, off + ksd * 2048 + pp * 1024) for pp in range(2)]


def step_mfma(step, i):
    g = step * 16 + i
    A = ('a', A_RING + 4 * (g % NF))
    k, n = step_slot(step)
    if k == 'WQ':
        ks, t = divmod(i, 8)
        d = ('v', V_QACC + 16 * t)
        return mfma(d, A, ('a', A_X + 4 * (2 * step + ks)), 0 if (step == 0 and ks == 0) else d)
    if k == 'K':
        d = ('v', sbuf(n))
        return mfma(d, A, ('a', A_QF + 4 * i), 0 if i == 0 else d)
    if k == 'V':
        j = (n - 16) % 8
        kk, dt = divmod(i, 4)
        d = ('v', V_OACC + 16 * dt)
        return mfma(d, A, ('v', V_P + 8 * (2 * j + (kk >> 1)) + 4 * (kk & 1)), 0 if (j == 0 and kk == 0) else d)
    c, j = divmod(n, 7)
    ksd, a = divmod(i, 2)
    d = ('a', 16 * (2 * j + a))
    return mfma(d, A, ('v', V_OACC + 4 * ksd), 0 if (c == 0 and ksd == 0) else d)


def tile_max(j, src, tmp):
    o = []
    for r in range(0, 16, 2):
        o.append(valu(f'v_max3_f32 v{V_MX},v{V_MX},v{src + r},v{src + r + 1}'))
    o.append(valu(f'v_mul_f32 v{tmp},s{S_C},v{V_MX}'))
    o.append(valu(f'v_ceil_f32 v{V_MT + j},v{tmp}'))
    return o


def tile_exp(j, src, tmp, mreg, cfg):
    o = []
    a, t0, t1 = tmp, tmp + 1, tmp + 2
    if j > 0:
        o.append(valu(f'v_sub_f32 v{a},v{V_MT + j - 1},v{mreg}'))
        o.append(valu(f'v_exp_f32 v{a},v{a}'))
    fm = [valu(f'v_fma_f32 v{src + r},v{src + r},s{S_C},-v{mreg}') for r in range(16)]
    ex = [valu(f'v_exp_f32 v{src + r},v{src + r}') for r in range(16)]
    ad = []
    ad.append(valu(f'v_add_f32 v{t0},v{src},v{src + 1}'))
    ad.append(valu(f'v_add_f32 v{t1},v{src + 2},v{src + 3}'))
    for r in range(4, 16):
        t = t0 if r % 2 == 0 else t1
        ad.append(valu(f'v_add_f32 v{t},v{t},v{src + r}'))
    cv = [valu(f'v_cvt_pk_bf16_f32 v{V_P + 8 * j + k},v{src + 2 * k},v{src + 2 * k + 1}') for k in range(8)]
    seq = []
    for r in range(16 + 4):
        if r < 16:
            seq.append(fm[r])
        if 1 <= r <= 16:
            seq.append(ex[r - 1])
        q = r - 3
        if q == 1:
            seq.append(ad[0])
        elif q == 3:
            seq.append(ad[1])
        elif 4 <= q < 16:
            seq.append(ad[q - 2])
        if q >= 1 and q % 2 == 1 and q < 16:
            seq.append(cv[q // 2])
    o += seq
    o.append(valu(f'v_add_f32 v{t0},v{t0},v{t1}'))
    if j > 0:
        o.append(valu(f'v_fma_f32 v{V_L},v{V_L},v{a},v{t0}'))
    else:
        o.append(valu(f'v_mov_b32 v{V_L},v{t0}'))
    return o


def tile_rescale(t, mf, tmp):
    o = [valu(f'v_sub_f32 v{tmp},v{mf},v{V_MT + t}'),
         valu(f'v_min_f32 v{tmp},0x437f0000,v{tmp}'),
         valu(f'v_cvt_u32_f32 v{tmp},v{tmp}'),
         valu(f'v_mul_u32_u24 v{tmp},0x800080,v{tmp}')]
    for k in range(8):
        r = V_P + 8 * t + k
        o.append(valu(f'v_pk_sub_u16 v{r},v{r},v{tmp} clamp'))
    return o


def ocvt(ksd):
    o = []
    for r in range(8):
        s = V_OACC + 8 * ksd + r
        o.append(valu(f'v_mul_f32 v{s},v{s},v{V_RL}'))
    for j in range(4):
        s = V_OACC + 8 * ksd + 2 * j
        o.append(valu(f'v_cvt_pk_bf16_f32 v{V_OACC + 4 * ksd + j},v{s},v{s + 1}'))
    return o


def out_tile_epi(cfg, nt, tb):
    o = []
    for r in range(16):
        o.append(valu(f'v_accvgpr_read_b32 v{tb + r},a{16 * nt + r}'))
    for j in range(8):
        o.append(valu(f'v_cvt_pk_bf16_f32 v{tb + j},v{tb + 2 * j},v{tb + 2 * j + 1}'))
    o.append(salu(f's_mov_b32 s{S_OFF2},{nt * 2048}'))
    o.append(buf_store(('v', tb), 4, V_ST, S_P, f's{S_OFF2}', 0, cfg['p_st_flags'], 'ST'))
    o.append(buf_store(('v', tb + 4), 4, V_ST, S_P, f's{S_OFF2}', 1024, cfg['p_st_flags'], 'ST'))
    return o


def build(cfg):
    p = Prog(cfg)
    p.pre.extend(p.stamp())
    prologue(p)
    o = p.pre
    for when, slot, mode in p.plan:
        if when == 'x2':
            o.extend(p.slot_loads(slot, mode))
    for i in range(LA):
        o.extend(frag_reads(p, 0, i))

    for step in range(NSTEP):
        for i in range(16):
            p.mf[step * 16 + i] = step_mfma(step, i)

    reads_at = {}
    for step in range(NSTEP):
        for i in range(16):
            if step == 0 and i < LA:
                continue
            g = step * 16 + i - LA
            if step > 0:
                g = max(g, (step - 1) * 16 + BG)
            reads_at.setdefault(g, []).append((step, i))

    segs = {'WQ': Seg([V_WQA + k for k in range(4)]), 'K': Seg([V_KA + k for k in range(8)]),
            'V': Seg([V_VA + k for k in range(4)]), 'WO': Seg([V_WOA + k for k in range(2)])}
    fine = cfg.get('fine', ())
    for step in range(NSTEP):
        g0 = step * 16
        nxt = step + 1
        for g in range(g0, g0 + 16):
            if g == g0 + BG:
                bl = []
                if step in fine:
                    bl.extend(p.stamp())
                if nxt < NSTEP:
                    slot = step_slot(nxt)
                    if slot not in p.regbase:
                        bl.append(wait_tag(slot))
                bl.append(wait_lgkm(0))
                if step in fine or (not fine and step in (13, 29, 37, 44, 52)):
                    bl.extend(p.stamp())
                bl.append(barrier())
                if step in fine:
                    bl.extend(p.stamp())
                if nxt == ST_K:
                    bl.extend(kaddr_setup())
                if nxt < NSTEP:
                    slot = step_slot(nxt)
                    bl.extend(segs[slot[0]].move((p.region[slot] * REG) >> 16))
                p.at(g, *bl)
            for (st, i) in reads_at.get(g, []):
                p.at(g, *frag_reads(p, st, i))
            if cfg['pairwait'] and (g % 2 == 0):
                regs = R('a', A_RING + 4 * (g % NF), 4) + R('a', A_RING + 4 * ((g + 1) % NF), 4)
                p.at(g, wait_regs(regs))

    per_step = {}
    for when, slot, mode in p.plan:
        if when not in ('pro', 'x2'):
            per_step.setdefault(when, []).append((slot, mode))
    for when, lst in per_step.items():
        g = when * 16 + BG + 1
        ndma = sum(1 for _, m in lst if m != 'xfer')
        d = cfg['dstride'] if ndma <= 1 else 1 + (14 // (4 * ndma))
        d = min(d, cfg['dstride'])
        for slot, mode in lst:
            ins = p.slot_loads(slot, mode)
            if mode == 'xfer':
                p.at(g, wait_tag(slot))
                for k, x in enumerate(ins):
                    p.at(g + k, x)
                continue
            p.at(g, *ins[:3])
            for k, x in enumerate(ins[3:]):
                p.at(g + d * (k + 1), x)
            g += 3 * d + 1
        assert g <= when * 16 + BG + 17, (when, g)
    p.spread(wo_dma_setup(), 20 * 16, 20 * 16 + 10)

    T = V_KT + 8
    for t in range(8):
        ins = []
        for j in range(8):
            ins.append(valu(f'v_cvt_pk_bf16_f32 v{T + j},v{V_QACC + 16 * t + 2 * j},v{V_QACC + 16 * t + 2 * j + 1}'))
        for j in range(8):
            ins.append(valu(f'v_accvgpr_write_b32 a{A_QF + 8 * t + j},v{T + j}'))
        g = min(13 * 16 + 8 + t + 4, ST_K * 16 + 2 * t - 1) if t > 0 else 13 * 16 + 12
        p.at(g, *ins)

    for j in range(15):
        src = sbuf(j)
        ins = tile_max(j, src, V_KT) + tile_exp(j, src, V_KT + 1, V_MT + j, cfg)
        g = (ST_K + j + 1) * 16 + 4
        p.spread(ins, g, g + 14)

    VT = V_VT
    MF = VT + 7
    tr = tile_max(15, V_T, VT)
    tr += [valu(f'v_mov_b32 v{VT},v{V_MT + 15}'),
           valu(f'v_mov_b32 v{MF},v{V_MT + 15}'),
           valu(f'v_permlane32_swap_b32 v{VT},v{MF}'),
           valu(f'v_max_f32 v{MF},v{MF},v{VT}')]
    tr += tile_rescale(0, MF, VT) + tile_rescale(1, MF, VT + 1)
    if not fine:
        p.at(ST_V0 * 16, *p.stamp())
    p.at(ST_V0 * 16, *tr)
    if not fine:
        p.at(ST_V0 * 16, *p.stamp())
    ins = tile_exp(15, V_T, VT + 2, MF, cfg)
    ins += [valu(f'v_mov_b32 v{VT + 2},v{V_L}'),
            valu(f'v_permlane32_swap_b32 v{VT + 2},v{V_L}'),
            valu(f'v_add_f32 v{V_L},v{V_L},v{VT + 2}'),
            valu(f'v_rcp_f32 v{V_RL},v{V_L}')]
    if cfg['zero_pad']:
        ins.append(valu(f'v_cndmask_b32 v{V_RL},0,v{V_RL},s[62:63]'))
    p.spread(ins, ST_V0 * 16 + 1, ST_V0 * 16 + 30)
    for j in range(7):
        ins = []
        for t in (2 * j + 2, 2 * j + 3):
            if t < 15:
                ins += tile_rescale(t, MF, VT + (t & 1))
        p.spread(ins, (ST_V0 + j) * 16 + 1, (ST_V0 + j) * 16 + 14)

    for st in (ST_O0, ST_O1):
        for ksd in range(8):
            g = st * 16 + max(0, 2 * ksd - 2)
            p.at(g, *ocvt(ksd))

    for j in range(7):
        for a in range(2):
            ins = out_tile_epi(cfg, 2 * j + a, 16 * ((2 * j + a) % 4))
            if j < 6:
                g = (ST_O1 + j + 1) * 16 + 2 + 7 * a
                p.spread(ins, g, g + 6)
            else:
                p.post.extend(ins)
    return p


def render(p, out):
    for x in p.pre:
        out.add(x)
    for g in range(NSTEP * 16):
        for x in p.gaps[g]:
            out.add(x)
        out.add(p.mf[g])
    for x in p.gaps[NSTEP * 16]:
        out.add(x)
    for x in p.post:
        out.add(x)
    if p.cfg['stamps']:
        for x in p.stamp():
            out.add(x)
        out.add(wait_vm(0))
        for x in p.stamp():
            out.add(x)
        out._emit('s_memrealtime s[62:63]')
        out._emit('s_waitcnt lgkmcnt(0)')
        out._emit('s_lshl_b32 s54,s2,2')
        out._emit(f's_add_u32 s54,s54,s{S_WAVE}')
        out._emit('s_lshl_b32 s54,s54,7')
        out._emit('s_add_u32 s18,s18,s54')
        out._emit('s_addc_u32 s19,s19,0')
        out._emit('s_add_u32 s18,s18,0x8000000')
        out._emit('s_addc_u32 s19,s19,0')
        out._emit('v_mov_b32 v0,0')
        for i in range(p.nstamp):
            out._emit(f'v_mov_b32 v1,s{S_ST + 2 * i}')
            out._emit(f'global_store_dword v0,v1,s[18:19] offset:{4 * i}')
            out._emit('s_nop 1')
        out._emit('v_mov_b32 v1,s62')
        out._emit('global_store_dword v0,v1,s[18:19] offset:124')
        out._emit('v_mov_b32 v1,s61')
        out._emit('global_store_dword v0,v1,s[18:19] offset:120')
    out._emit('s_endpgm')


KD = """.amdhsa_kernel {name}
  .amdhsa_next_free_vgpr {vgpr}
  .amdhsa_next_free_sgpr 102
  .amdhsa_accum_offset {acc}
  .amdhsa_group_segment_fixed_size 0
  .amdhsa_kernarg_size 64
  .amdhsa_user_sgpr_count 2
  .amdhsa_user_sgpr_kernarg_segment_ptr 1
  .amdhsa_system_sgpr_workgroup_id_x 1
  .amdhsa_float_denorm_mode_32 3
.end_amdhsa_kernel
"""


def kernel1(cfg):
    o = Out()
    o._emit('s_cmp_ge_u32 s2,256')
    o._emit('s_cbranch_scc1 L_exit1')
    if cfg['stamps']:
        o._emit('s_memrealtime s[62:63]')
        o._emit('s_waitcnt lgkmcnt(0)')
        o._emit('s_mov_b32 s61,s62')
    p = build(cfg)
    render(p, o)
    txt = o.text() + '\nL_exit1:\ns_endpgm\n'
    return txt, (o.counts, o.n_nop, p.region)


def kernel2(cfg):
    from gen import kernel2 as k2
    return k2(cfg)


HEADER = """; Fused multi-head attention block (Q projection, attention over a K/V cache, output projection)
; @launch kernel={k1} grid=(256,1,1) block=(256,1,1) lds=163840
; @launch kernel={k2} grid=(448,1,1) block=(256,1,1) lds=0
.amdgcn_target "amdgcn-amd-amdhsa--gfx950"
"""


def generate(cfg):
    t1, info = kernel1(cfg)
    t2 = kernel2(cfg)
    s = HEADER.format(k1=KN1, k2=KN2)
    if cfg.get('only') == 1:
        s = '\n'.join(l for l in s.split('\n') if KN2 not in l)
    if cfg.get('only') == 2:
        s = '\n'.join(l for l in s.split('\n') if ('kernel=' + KN1) not in l)
    s += '.text\n'
    s += f'.set CODE_SLICES,(L_code_end-{KN1})/1024\n'
    s += f'.globl {KN1}\n.p2align 8\n.type {KN1},@function\n{KN1}:\n' + t1 + 'L_code_end:\n'
    s += f'.globl {KN2}\n.p2align 8\n.type {KN2},@function\n{KN2}:\n' + t2 + '\n'
    s += '.section .rodata,"a"\n.p2align 6\n'
    s += KD.format(name=KN1, vgpr=512, acc=256)
    s += '.p2align 6\n'
    s += KD.format(name=KN2, vgpr=80, acc=80)
    return s, info


if __name__ == '__main__':
    cfg = dict(CFG)
    outp = sys.argv[1]
    for a in sys.argv[2:]:
        k, v = a.split('=', 1)
        if v in ('True', 'False'):
            v = v == 'True'
        elif v.lstrip('-').isdigit():
            v = int(v)
        if k == 'fine':
            v = tuple(int(t) for t in str(v).split('.'))
        cfg[k] = v
    s, info = generate(cfg)
    open(outp, 'w').write(s)
    print(outp, len(s), 'bytes', info)
```

```python
import re
FAKE16 = False


def R(kind, lo, n=1):
    return [(kind, lo + i) for i in range(n)]


def parse_regs(tok):
    tok = tok.strip()
    neg = tok.lstrip('-')
    m = re.fullmatch(r'([vas])\[(\d+):(\d+)\]', neg)
    if m:
        return R(m.group(1), int(m.group(2)), int(m.group(3)) - int(m.group(2)) + 1)
    m = re.fullmatch(r'([vas])(\d+)', neg)
    if m:
        return [(m.group(1), int(m.group(2)))]
    if neg in ('m0', 'scc'):
        return [(neg, 0)]
    if neg in ('vcc', 'exec'):
        return [(neg, 0)]
    return []


def rr(kind, lo, n):
    return f"{kind}{lo}" if n == 1 else f"{kind}[{lo}:{lo + n - 1}]"


class Ins:
    __slots__ = ('text', 'rd', 'wr', 'kind', 'tag', 'states', 'srcc', 'exactc', 'note')

    def __init__(self, text, rd=(), wr=(), kind='other', tag=None, states=1, srcc=(), note=None):
        self.text = text
        self.rd = list(rd)
        self.wr = list(wr)
        self.kind = kind
        self.tag = tag
        self.states = states
        self.srcc = list(srcc)
        self.note = note


TRANS = ('v_exp_f32', 'v_log_f32', 'v_rcp_f32', 'v_rsq_f32', 'v_sqrt_f32')


def ops(text):
    parts = text.split(None, 1)
    op = parts[0]
    rest = parts[1] if len(parts) > 1 else ''
    toks = [t.strip() for t in rest.split(',')]
    return op, toks


def valu(text, extra_rd=(), extra_wr=()):
    op, toks = ops(text)
    last = toks[-1].split()
    toks[-1] = last[0] if last else ''
    wr = parse_regs(toks[0])
    rd = []
    for t in toks[1:]:
        rd += parse_regs(t)
    kind = 'valu'
    base = op.replace('_e32', '').replace('_e64', '')
    if base in TRANS:
        kind = 'trans'
    if base in ('v_fmac_f32', 'v_dot2c_f32_bf16', 'v_writelane_b32'):
        rd += wr
    if base.startswith('v_permlane32_swap') or base.startswith('v_permlane16_swap'):
        kind = 'permlane'
        rd = parse_regs(toks[0]) + parse_regs(toks[1])
        wr = list(rd)
    if base in ('v_readfirstlane_b32', 'v_readlane_b32'):
        kind = 'readlane'
    if base.startswith('v_cmp'):
        kind = 'vcmp'
    if base == 'v_cndmask_b32' and len(toks) == 4:
        pass
    return Ins(text, rd + list(extra_rd), wr + list(extra_wr), kind)


def salu(text, extra_rd=(), extra_wr=()):
    op, toks = ops(text)
    wr = parse_regs(toks[0]) if toks and toks[0] else []
    rd = []
    for t in toks[1:]:
        rd += parse_regs(t)
    if op.startswith('s_cmp'):
        rd = rd + wr
        wr = [('scc', 0)]
    return Ins(text, rd + list(extra_rd), wr + list(extra_wr), 'salu')


def mfma(d, a, b, c):
    D = R(d[0], d[1], 16)
    A = R(a[0], a[1], 4)
    B = R(b[0], b[1], 4)
    if c == 0:
        ctext = '0'
        C = []
    else:
        ctext = rr(c[0], c[1], 16)
        C = R(c[0], c[1], 16)
    t = f"v_mfma_f32_32x32x16_bf16 {rr(d[0], d[1], 16)},{rr(a[0], a[1], 4)},{rr(b[0], b[1], 4)},{ctext}"
    if FAKE16:
        def one(off):
            dd = rr(d[0], d[1] + off, 4)
            cc = '0' if c == 0 else rr(c[0], c[1] + off, 4)
            return f"v_mfma_f32_16x16x32_bf16 {dd},{rr(a[0], a[1], 4)},{rr(b[0], b[1], 4)},{cc}"
        t = one(0) + '\n' + one(8)
    i = Ins(t, A + B + C, D, 'mfma', srcc=C)
    i.note = (A + B, C, D)
    return i


def ds_read(op, dst, n, addr, off):
    assert 0 <= off < 65536, off
    t = f"{op} {rr(dst[0], dst[1], n)},v{addr}" + (f" offset:{off}" if off else '')
    return Ins(t, [('v', addr)], R(dst[0], dst[1], n), 'ds_read')


def ds_write(op, addr, src, n, off):
    assert 0 <= off < 65536, off
    t = f"{op} v{addr},{rr(src[0], src[1], n)}" + (f" offset:{off}" if off else '')
    return Ins(t, [('v', addr)] + R(src[0], src[1], n), [], 'ds_write')


def buf_load(dst, n, voff, srd, soff, imm=0, flags='', tag=None):
    op = {1: 'buffer_load_dword', 2: 'buffer_load_dwordx2', 4: 'buffer_load_dwordx4'}[n]
    assert 0 <= imm < 4096
    so = soff if isinstance(soff, str) else str(soff)
    t = f"{op} {rr(dst[0], dst[1], n)},v{voff},s[{srd}:{srd + 3}],{so} offen" + (f" offset:{imm}" if imm else '') + (' ' + flags if flags else '')
    return Ins(t, [('v', voff)] + R('s', srd, 4) + parse_regs(so), R(dst[0], dst[1], n), 'vload', tag)


def dma(voff, srd, soff, imm=0, flags='', tag=None):
    assert 0 <= imm < 4096
    so = soff if isinstance(soff, str) else str(soff)
    t = f"buffer_load_dwordx4 v{voff},s[{srd}:{srd + 3}],{so} offen" + (f" offset:{imm}" if imm else '') + (' ' + flags if flags else '') + ' lds'
    return Ins(t, [('v', voff), ('m0', 0)] + R('s', srd, 4) + parse_regs(so), [], 'dma', tag)


def buf_store(src, n, voff, srd, soff, imm=0, flags='', tag=None):
    op = {1: 'buffer_store_dword', 2: 'buffer_store_dwordx2', 4: 'buffer_store_dwordx4'}[n]
    assert 0 <= imm < 4096
    so = soff if isinstance(soff, str) else str(soff)
    t = f"{op} {rr(src[0], src[1], n)},v{voff},s[{srd}:{srd + 3}],{so} offen" + (f" offset:{imm}" if imm else '') + (' ' + flags if flags else '')
    i = Ins(t, [('v', voff)] + R('s', srd, 4) + parse_regs(so) + R(src[0], src[1], n), [], 'vstore', tag)
    i.note = R(src[0], src[1], n) if n >= 3 else []
    return i


def raw(text, rd=(), wr=(), kind='other', states=1, tag=None):
    return Ins(text, rd, wr, kind, tag, states)


def barrier():
    return Ins('s_barrier', kind='barrier')


def wait_lgkm(n=0):
    return Ins(f'WAITLGKM {n}', kind='wait_lgkm', tag=n)


def wait_tag(tag):
    return Ins(f'WAITTAG {tag}', kind='wait_tag', tag=tag)


def wait_regs(regs):
    return Ins('WAITREGS', rd=list(regs), kind='wait_regs')


def wait_vm(n=0):
    return Ins(f'WAITVM {n}', kind='wait_vm', tag=n)


class Out:
    def __init__(self, verbose=False):
        self.lines = []
        self.pos = 0
        self.ds = []
        self.vm = []
        self.w_mfma = {}
        self.w_mfma_d = {}
        self.w_valu = {}
        self.w_trans = {}
        self.w_vsgpr = {}
        self.w_m0 = -100
        self.r_srcc = {}
        self.st_data = {}
        self.n_nop = 0
        self.counts = {}

    def _emit(self, text, states=1):
        self.lines.append(text)
        self.pos += states

    def _nop(self, n):
        self.n_nop += n
        while n > 0:
            k = min(n, 16)
            self._emit(f's_nop {k - 1}', k)
            n -= k

    def _wait(self, vm=None, lgkm=None):
        parts = []
        if vm is not None:
            parts.append(f'vmcnt({vm})')
        if lgkm is not None:
            parts.append(f'lgkmcnt({lgkm})')
        self._emit('s_waitcnt ' + ' '.join(parts))

    def _drain_ds(self, n):
        if len(self.ds) > n:
            self._wait(lgkm=min(n, 15))
            keep = min(n, 15)
            self.ds = self.ds[len(self.ds) - keep:] if keep else []

    def _drain_vm(self, n):
        if len(self.vm) > n:
            k = min(n, 63)
            self._wait(vm=k)
            self.vm = self.vm[len(self.vm) - k:] if k else []

    def add(self, ins):
        k = ins.kind
        self.counts[k] = self.counts.get(k, 0) + 1
        if k == 'wait_lgkm':
            self._drain_ds(ins.tag)
            return
        if k == 'wait_vm':
            self._drain_vm(ins.tag)
            return
        if k == 'wait_tag':
            last = -1
            for i, (_, t) in enumerate(self.vm):
                if t == ins.tag:
                    last = i
            if last >= 0:
                self._drain_vm(len(self.vm) - 1 - last)
            return
        touched = set(ins.rd) | set(ins.wr)
        if k == 'wait_regs':
            need = -1
            for i, d in enumerate(self.ds):
                if d & touched:
                    need = i
            if need >= 0:
                self._drain_ds(len(self.ds) - 1 - need)
            return
        need = -1
        for i, d in enumerate(self.ds):
            if d & touched:
                need = i
        if need >= 0:
            self._drain_ds(len(self.ds) - 1 - need)
        need = -1
        for i, (d, _) in enumerate(self.vm):
            if d & touched:
                need = i
        if need >= 0:
            self._drain_vm(len(self.vm) - 1 - need)
        if k in ('vload', 'vstore', 'dma') and len(self.vm) >= 63:
            self._drain_vm(62)
        if k in ('ds_read', 'ds_write') and len(self.ds) >= 15:
            self._drain_ds(14)
        req = 0

        def dist(tbl, regs, d):
            nonlocal req
            for r in regs:
                if r in tbl:
                    gap = self.pos - tbl[r] - 1
                    if gap < d:
                        req = max(req, d - gap)

        if k == 'mfma':
            ab, c, dd = ins.note
            dist(self.w_valu, ab + c, 2)
            dist(self.w_mfma, ab, 12)
            for r in c:
                if r in self.w_mfma and self.w_mfma_d[r] != (c[0], len(c)):
                    dist(self.w_mfma, [r], 10)
            if not c:
                dist(self.w_mfma, dd, 12)
        elif k in ('valu', 'trans', 'permlane', 'readlane', 'vcmp'):
            dist(self.w_mfma, ins.rd + ins.wr, 12)
            dist(self.r_srcc, ins.wr, 7)
            dist(self.st_data, ins.wr, 2)
            if k != 'trans':
                dist(self.w_trans, ins.rd, 1)
            if k == 'permlane':
                dist(self.w_valu, ins.rd, 2)
            if k == 'readlane':
                dist(self.w_valu, ins.rd, 1)
            dist(self.w_vsgpr, [r for r in ins.rd if r[0] in ('s', 'vcc')], 2)
        elif k in ('ds_read', 'ds_write', 'vload', 'vstore', 'dma'):
            dist(self.w_mfma, ins.rd + ins.wr, 12)
            dist(self.st_data, ins.wr, 1)
            if k in ('vload', 'vstore', 'dma'):
                dist(self.w_vsgpr, [r for r in ins.rd if r[0] == 's'], 5)
            if k == 'dma':
                gap = self.pos - self.w_m0 - 1
                if gap < 1:
                    req = max(req, 1 - gap)
        elif k == 'salu':
            dist(self.w_vsgpr, [r for r in ins.rd if r[0] in ('s', 'vcc')], 4)
        if req:
            self._nop(req)
        p = self.pos
        self._emit(ins.text, ins.states)
        if k == 'mfma':
            ab, c, dd = ins.note
            for r in dd:
                self.w_mfma[r] = p
                self.w_mfma_d[r] = (dd[0], len(dd))
                self.w_valu.pop(r, None)
            for r in c:
                self.r_srcc[r] = p
        elif k in ('valu', 'trans', 'permlane', 'readlane', 'vcmp'):
            for r in ins.wr:
                if r[0] in ('s', 'vcc'):
                    self.w_vsgpr[r] = p
                else:
                    self.w_valu[r] = p
                    self.w_mfma.pop(r, None)
                    if k == 'trans':
                        self.w_trans[r] = p
                    else:
                        self.w_trans.pop(r, None)
        elif k == 'salu':
            for r in ins.wr:
                if r == ('m0', 0):
                    self.w_m0 = p
                self.w_vsgpr.pop(r, None)
        if k == 'ds_read':
            self.ds.append(set(ins.wr))
            for r in ins.wr:
                self.w_mfma.pop(r, None)
                self.w_valu.pop(r, None)
        elif k == 'ds_write':
            self.ds.append(set())
        elif k == 'vload':
            self.vm.append((set(ins.wr), ins.tag))
            for r in ins.wr:
                self.w_mfma.pop(r, None)
                self.w_valu.pop(r, None)
        elif k == 'dma':
            self.vm.append((set(), ins.tag))
        elif k == 'vstore':
            self.vm.append((set(), ins.tag))
            for r in ins.note:
                self.st_data[r] = p

    def label(self, name):
        self.lines.append(name + ':')

    def text(self):
        return '\n'.join(self.lines)
```

```python
import sys
from emit import *

KN1 = "standalone__mha_block_cached__near_ridge_kernel"
KN2 = "mha_reduce_kernel"

CFG = dict(
    kv_flags='nt', w_flags='', p_st_flags='', p_ld_flags='',
    stamps=False, code_pf=True, rot=True, zero_pad=True, pairwait=True,
    dstride=3, map=4,
)

REG = 16384
NF = 8
LA = 6
BG = 12

S_X, S_K, S_V, S_WQ, S_WO, S_P = 20, 24, 28, 32, 36, 40
S_WAVE = 44
S_C = 46
S_OFF = 48
S_M0B = 49
S_OK, S_OV, S_OWQ, S_OWO = 50, 51, 52, 53
S_OX = 45
S_T = 54
S_OFF2 = 60
S_ST = 64

V_P = 0
V_QACC = 0
V_SB = 128
V_KT = 176
V_OACC = 128
V_LANE = 192
V_KA = 193
V_WQA = 193
V_VT = 193
V_VA = 201
V_WOA = 205
V_KW = 207
V_DK, V_DV, V_DW = 208, 212, 216
V_XA = 176
S_R = 92
V_ST = 220
V_MX, V_L, V_RL = 221, 222, 223
V_MT = 224
V_T = 240

A_X = 64
A_KP = 96
A_QF = 0
A_RING = 224

NSTEP = 60
ST_Q, ST_K, ST_V0, ST_O0, ST_V1, ST_O1 = 0, 14, 30, 38, 45, 53


def sbuf(j):
    return V_T if j == 15 else V_SB + 16 * (j % 3)


def consume_step(slot):
    k, n = slot
    if k == 'WQ':
        return n
    if k == 'X':
        return 2 * n
    if k == 'K':
        return ST_K + n
    if k == 'V':
        return ST_V0 + n - 16 if n < 24 else ST_V1 + n - 24
    return ST_O0 + n if n < 7 else ST_O1 + n - 7


def step_slot(step):
    if step < ST_K:
        return ('WQ', step)
    if step < ST_V0:
        return ('K', step - ST_K)
    if step < ST_O0:
        return ('V', 16 + step - ST_V0)
    if step < ST_V1:
        return ('WO', step - ST_O0)
    if step < ST_O1:
        return ('V', 24 + step - ST_V1)
    return ('WO', 7 + step - ST_O1)


def load_plan(cfg):
    P = [('pro', ('X', 0), 'lds'), ('pro', ('WQ', 0), 'lds'), ('pro', ('WQ', 1), 'lds'), ('pro', ('K', 0), 'lds'),
         ('g0', ('X', 1), 'lds'), ('g0', ('WQ', 2), 'lds'), ('g0', ('WQ', 3), 'lds')]
    kq = {0: (1, 'lds'), 2: (2, 'lds'), 4: (3, 'lds'), 6: (4, 'reg'), 8: (5, 'reg'), 9: (6, 'reg')}
    for s in range(10):
        if s % 2 == 1 and (s + 3) // 2 <= 6:
            P.append((s, ('X', (s + 3) // 2), 'lds'))
        P.append((s, ('WQ', s + 4), 'lds'))
        if s in kq:
            P.append((s, ('K', kq[s][0]), kq[s][1]))
    P += [(10, ('K', 7), 'lds'), (10, ('K', 8), 'lds'), (11, ('K', 9), 'lds'),
          (12, ('K', 4), 'xfer'), (12, ('K', 10), 'lds'), (13, ('K', 5), 'xfer'), (14, ('K', 6), 'xfer')]
    nxt = 11
    for j in range(1, 14):
        P.append((ST_K + j, ('K' if nxt < 16 else 'V', nxt), 'lds'))
        nxt += 1
    assert nxt == 24
    P += [(28, ('WO', 0), 'lds'), (29, ('WO', 1), 'lds'),
          (30, ('V', 24), 'lds'), (31, ('WO', 2), 'lds'), (32, ('V', 25), 'lds'), (33, ('WO', 3), 'lds'),
          (34, ('V', 26), 'lds'), (35, ('V', 27), 'lds'), (36, ('V', 28), 'lds'), (37, ('WO', 4), 'lds'),
          (38, ('WO', 5), 'lds'), (39, ('V', 29), 'lds'), (40, ('WO', 6), 'lds'), (41, ('V', 30), 'lds'),
          (42, ('V', 31), 'lds'), (43, ('WO', 7), 'lds'), (44, ('WO', 8), 'lds'),
          (45, ('WO', 9), 'lds'), (46, ('WO', 10), 'lds'), (47, ('WO', 11), 'lds'), (48, ('WO', 12), 'lds'),
          (49, ('WO', 13), 'lds')]
    return P


def allocate(plan):
    order = {'pro': -2, 'g0': -1}
    ev = sorted(range(len(plan)), key=lambda i: (order.get(plan[i][0], plan[i][0]), i))
    free = list(range(10))
    region, regbase = {}, {}
    nreg = 0
    cur = -1
    minfree = 10
    for i in ev:
        when, slot, mode = plan[i]
        w = order.get(when, when)
        while cur < w:
            cur += 1
            free.append(region[step_slot(cur)])
            if cur % 2 == 0 and cur <= 12:
                free.append(region[('X', cur // 2)])
        if mode == 'reg':
            regbase[slot] = A_KP + 16 * nreg
            nreg += 1
            assert nreg <= 8
        else:
            assert free, ('no free region', when, slot)
            free.sort()
            region[slot] = free.pop(0)
            c = consume_step(slot)
            assert w < c - 1 or w < 0, ('too late', when, slot)
        minfree = min(minfree, len(free))
    return region, regbase


class Seg:
    def __init__(self, regs):
        self.regs, self.seg = regs, 0

    def move(self, seg):
        if seg == self.seg:
            return []
        d = (seg - self.seg) * 65536
        self.seg = seg
        return [valu(f'v_add_u32 v{r},{d & 0xffffffff:#x},v{r}') for r in self.regs]


class Prog:
    def __init__(self, cfg):
        self.cfg = cfg
        self.gaps = [[] for _ in range(NSTEP * 16 + 1)]
        self.mf = [None] * (NSTEP * 16)
        self.pre, self.post = [], []
        self.nstamp = 0
        self.plan = load_plan(cfg)
        self.region, self.regbase = allocate(self.plan)

    def at(self, g, *ins):
        self.gaps[g].extend(ins)

    def spread(self, ins, g0, g1):
        n, m = len(ins), g1 - g0 + 1
        for k, x in enumerate(ins):
            self.at(g0 + (k * m) // n, x)

    def stamp(self):
        if not self.cfg['stamps']:
            return []
        i = self.nstamp
        self.nstamp += 1
        assert i < 14
        return [raw(f's_memtime s[{S_ST + 2 * i}:{S_ST + 2 * i + 1}]')]

    def slot_loads(self, slot, mode):
        cfg = self.cfg
        k, n = slot
        pre = []
        if k == 'K':
            base, const, voff, srd, fl = S_OK, n * 16384, V_DK, S_K, cfg['kv_flags']
        elif k == 'V':
            c, j = divmod(n - 16, 8)
            base, const, voff, srd, fl = S_OV, j * 32768 + c * 256, V_DV, S_V, cfg['kv_flags']
        elif k == 'X':
            pre = [salu(f's_add_u32 s{S_OFF},s{S_OX},s{S_R + n}')]
            base, const, voff, srd, fl = None, 0, V_DV, S_X, cfg['w_flags']
        elif k == 'WQ':
            pre = [salu(f's_lshl_b32 s{S_OFF},s{S_R + n // 2},12'),
                   salu(f's_add_u32 s{S_OFF},s{S_OFF},s{S_OWQ}')]
            base, const, voff, srd, fl = S_OFF, (n & 1) * 262144, V_DW, S_WQ, cfg['w_flags']
            if const == 0:
                base = None
        else:
            c, j = divmod(n, 7)
            pre = [salu(f's_add_u32 s{S_OFF},s{S_OWO},s{S_R + j}')]
            base, const, voff, srd, fl = S_OFF, 128 * c * 896, V_DW, S_WO, cfg['w_flags']
            if const == 0:
                base = None
        if mode == 'xfer':
            rb = self.regbase[slot]
            off = self.region[slot] * REG
            seg, lo = off >> 16, off & 0xffff
            o = []
            if seg:
                o.append(valu(f'v_add_u32 v{V_KT + 4},{seg << 16:#x},v{V_KW}'))
            a = V_KT + 4 if seg else V_KW
            return o + [ds_write('ds_write_b128', a, ('a', rb + 4 * i), 4, lo + i * 1024) for i in range(4)]
        o = list(pre)
        if base is not None:
            o.append(salu(f's_add_u32 s{S_OFF},s{base},{const}'))
        if mode == 'reg':
            rb = self.regbase[slot]
            for i in range(4):
                o.append(buf_load(('a', rb + 4 * i), 4, voff + i, srd, f's{S_OFF}', i * 1024, fl, slot))
        else:
            o.insert(0, salu(f's_add_u32 m0,s{S_M0B},{self.region[slot] * REG}'))
            for i in range(4):
                o.append(dma(voff + i, srd, f's{S_OFF}', i * 1024, fl, slot))
        return o


def prologue(p):
    cfg = p.cfg
    o = p.pre
    L, T = V_LANE, V_T
    H, B, BH, TT = S_T, S_T + 1, S_T + 3, S_T + 4
    o.append(raw('s_load_dwordx16 s[4:19],s[0:1],0', wr=R('s', 4, 16)))
    o.append(valu(f'v_and_b32 v{L},63,v0'))
    o.append(valu(f'v_lshrrev_b32 v{T},6,v0'))
    o.append(valu(f'v_readfirstlane_b32 s{S_WAVE},v{T}'))
    if cfg['code_pf']:
        o.append(raw(f's_getpc_b64 s[{TT}:{TT + 1}]', wr=R('s', TT, 2), kind='salu'))
        o.append(salu(f's_and_b32 s{TT},s{TT},0xffffff00'))
        o.append(salu(f's_lshr_b32 s{S_T + 2},s2,3'))
        o.append(salu(f's_lshl_b32 s{S_T + 2},s{S_T + 2},2'))
        o.append(salu(f's_add_u32 s{S_T + 2},s{S_T + 2},s{S_WAVE}'))
        o.append(salu(f's_min_u32 s{S_T + 2},s{S_T + 2},CODE_SLICES-1'))
        o.append(salu(f's_lshl_b32 s{S_T + 2},s{S_T + 2},10'))
        o.append(valu(f'v_and_b32 v{T + 2},15,v{L}'))
        o.append(valu(f'v_lshlrev_b32 v{T + 2},6,v{T + 2}'))
        o.append(valu(f'v_add_u32 v{T + 2},s{S_T + 2},v{T + 2}'))
        o.append(Ins(f'global_load_dword v147,v{T + 2},s[{TT}:{TT + 1}]',
                     [('v', T + 2)] + R('s', TT, 2), [('v', 147)], 'vload', 'PF'))
    if cfg['map'] == 2:
        o.append(salu(f's_and_b32 s{H},s2,7'))
        o.append(salu(f's_lshr_b32 s{B},s2,3'))
        o.append(salu(f's_lshl_b32 s{H},s{H},1'))
        o.append(salu(f's_and_b32 s{S_T + 2},s{B},1'))
        o.append(salu(f's_add_u32 s{H},s{H},s{S_T + 2}'))
        o.append(salu(f's_lshr_b32 s{B},s{B},1'))
    else:
        o.append(salu(f's_and_b32 s{H},s2,3'))
        o.append(salu(f's_lshl_b32 s{H},s{H},2'))
        o.append(salu(f's_bfe_u32 s{S_T + 2},s2,0x20003'))
        o.append(salu(f's_add_u32 s{H},s{H},s{S_T + 2}'))
        o.append(salu(f's_bfe_u32 s{B},s2,0x10002'))
        o.append(salu(f's_lshl_b32 s{B},s{B},3'))
        o.append(salu(f's_lshr_b32 s{S_T + 2},s2,5'))
        o.append(salu(f's_add_u32 s{B},s{B},s{S_T + 2}'))
    RT = S_T + 2
    if cfg['rot']:
        o.append(salu(f's_mul_i32 s{RT},s{B},37'))
        o.append(salu(f's_lshr_b32 s{RT},s{RT},8'))
        o.append(salu(f's_mul_i32 s{RT},s{RT},7'))
        o.append(salu(f's_sub_u32 s{RT},s{B},s{RT}'))
    else:
        o.append(salu(f's_mov_b32 s{RT},0'))
    for c in range(7):
        o.append(salu(f's_lshl_b32 s{S_R + c},s{RT},7'))
        if c < 6:
            o.append(salu(f's_add_u32 s{RT},s{RT},1'))
            o.append(salu(f's_cmp_eq_u32 s{RT},7'))
            o.append(salu(f's_cselect_b32 s{RT},0,s{RT}', extra_rd=[('scc', 0)]))
    o.append(salu(f's_lshl_b32 s{S_M0B},s{S_WAVE},12'))
    o.append(salu(f's_mul_i32 s{S_OX},s{S_WAVE},{32 * 896}'))
    o.append(salu(f's_lshl_b32 s{S_OWQ},s{S_WAVE},16'))
    o.append(valu(f'v_lshrrev_b32 v{T + 2},3,v{L}'))
    o.append(valu(f'v_mul_u32_u24 v{T + 2},896,v{T + 2}'))
    o.append(valu(f'v_lshrrev_b32 v{T + 3},4,v{L}'))
    o.append(valu(f'v_and_b32 v{T + 4},7,v{L}'))
    o.append(valu(f'v_xor_b32 v{T + 4},v{T + 4},v{T + 3}'))
    o.append(valu(f'v_lshl_add_u32 v{V_DV},v{T + 4},4,v{T + 2}'))
    o.append(valu(f'v_xor_b32 v{T + 4},4,v{T + 4}'))
    o.append(valu(f'v_lshl_add_u32 v{V_DV + 1},v{T + 4},4,v{T + 2}'))
    o.append(valu(f'v_add_u32 v{V_DV + 2},{2 * 6144},v{V_DV}'))
    o.append(valu(f'v_add_u32 v{V_DV + 1},6144,v{V_DV + 1}'))
    o.append(valu(f'v_add_u32 v{V_DV + 3},{2 * 6144},v{V_DV + 1}'))
    o.append(valu(f'v_and_b32 v{T},31,v{L}'))
    o.append(valu(f'v_lshrrev_b32 v{T + 1},5,v{L}'))
    for i in range(2):
        o.append(valu(f'v_add_u32 v{T + 2},{2 * i},v{T + 1}'))
        o.append(valu(f'v_lshlrev_b32 v{T + 2},2,v{T + 2}'))
        o.append(valu(f'v_xor_b32 v{T + 2},v{T + 2},v{T}'))
        o.append(valu(f'v_lshlrev_b32 v{T + 2},4,v{T + 2}'))
        o.append(valu(f'v_lshl_add_u32 v{T + 2},v{T + 1},13,v{T + 2}'))
        if i:
            o.append(valu(f'v_add_u32 v{V_DW + 1},{2 * 8192 - 1024},v{T + 2}'))
        else:
            o.append(valu(f'v_mov_b32 v{V_DW},v{T + 2}'))
    o.append(valu(f'v_add_u32 v{V_DW + 2},{4 * 8192 - 2048},v{V_DW}'))
    o.append(valu(f'v_add_u32 v{V_DW + 3},{4 * 8192 - 2048},v{V_DW + 1}'))
    o.append(salu(f's_mul_i32 s{TT},s{B},100352'))
    o.append(salu(f's_lshl_b32 s{TT + 1},s{H},9'))
    o.append(salu(f's_mov_b32 s{S_X + 2},100352'))
    o.append(salu(f's_mov_b32 s{S_X + 3},0x20000'))
    o.append(salu(f's_sub_u32 s{S_WQ + 2},{448 * 8192},s{TT + 1}'))
    o.append(salu(f's_mov_b32 s{S_WQ + 3},0x20000'))
    o.append(raw('s_waitcnt lgkmcnt(0)'))
    o.append(salu(f's_add_u32 s{S_X},s4,s{TT}'))
    o.append(salu(f's_addc_u32 s{S_X + 1},s5,0'))
    o.append(salu(f's_add_u32 s{S_WQ},s10,s{TT + 1}'))
    o.append(salu(f's_addc_u32 s{S_WQ + 1},s11,0'))
    pro = [(slot, mode) for when, slot, mode in p.plan if when == 'pro']
    for slot, mode in pro:
        if slot[0] != 'K':
            o.extend(p.slot_loads(slot, mode))
    o.append(salu(f's_lshl_b32 s{BH},s{B},4'))
    o.append(salu(f's_add_u32 s{BH},s{BH},s{H}'))
    o.append(salu(f's_lshl_b32 s{TT},s{BH},18'))
    o.append(salu(f's_add_u32 s{S_K},s6,s{TT}'))
    o.append(salu(f's_addc_u32 s{S_K + 1},s7,0'))
    o.append(salu(f's_mov_b32 s{S_K + 2},0x40000'))
    o.append(salu(f's_mov_b32 s{S_K + 3},0x20000'))
    o.append(salu(f's_mov_b32 s{S_OK},s{S_M0B}'))
    o.append(salu(f's_and_b32 s{S_T + 2},s{S_WAVE},1'))
    o.append(salu(f's_lshl_b32 s{S_T + 2},s{S_T + 2},3'))
    o.append(valu(f'v_add_u32 v{T + 3},s{S_T + 2},v{T + 1}'))
    for i in range(4):
        o.append(valu(f'v_add_u32 v{T + 2},{2 * i},v{T + 3}'))
        o.append(valu(f'v_xor_b32 v{T + 2},v{T + 2},v{T}'))
        o.append(valu(f'v_lshlrev_b32 v{T + 2},4,v{T + 2}'))
        o.append(valu(f'v_lshl_add_u32 v{V_DK + i},v{T + 1},9,v{T + 2}'))
    for slot, mode in pro:
        if slot[0] == 'K':
            o.extend(p.slot_loads(slot, mode))
    o.append(salu(f's_add_u32 s{S_V},s8,s{TT}'))
    o.append(salu(f's_addc_u32 s{S_V + 1},s9,0'))
    o.append(salu(f's_mov_b32 s{S_V + 2},0x40000'))
    o.append(salu(f's_mov_b32 s{S_V + 3},0x20000'))
    o.append(salu(f's_lshl_b32 s{S_OV},s{S_WAVE},13'))
    o.append(salu(f's_mul_i32 s{TT},s{H},{256 * 896}'))
    o.append(salu(f's_add_u32 s{S_WO},s12,s{TT}'))
    o.append(salu(f's_addc_u32 s{S_WO + 1},s13,0'))
    o.append(salu(f's_mov_b32 s{S_WO + 2},{256 * 896}'))
    o.append(salu(f's_mov_b32 s{S_WO + 3},0x20000'))
    o.append(salu(f's_mul_i32 s{S_OWO},s{S_WAVE},{32 * 896}'))
    o.append(salu(f's_mul_i32 s{TT},s{BH},114688'))
    o.append(salu(f's_add_u32 s{S_P},s18,s{TT}'))
    o.append(salu(f's_addc_u32 s{S_P + 1},s19,0'))
    o.append(salu(f's_mov_b32 s{S_P + 2},114688'))
    o.append(salu(f's_mov_b32 s{S_P + 3},0x20000'))
    o.append(salu(f's_mov_b32 s{S_C},0x3db8aa3b'))
    o.append(salu(f's_mov_b32 s{S_C + 1},0x3db8aa3b'))
    o.append(valu(f'v_lshlrev_b32 v144,4,v{L}'))
    o.append(valu(f'v_add_u32 v{V_KW},s{S_M0B},v144'))
    o.append(valu(f'v_bfe_u32 v{T + 2},v{L},2,2'))
    o.append(valu(f'v_and_b32 v{T + 3},3,v{L}'))
    o.append(valu(f'v_bfe_u32 v{T + 4},v{L},4,1'))
    o.append(valu(f'v_lshl_add_u32 v{T + 5},v{T + 1},3,v{T + 2}'))
    o.append(valu(f'v_lshlrev_b32 v{T + 5},9,v{T + 5}'))
    o.append(valu(f'v_lshl_add_u32 v{T + 5},v{T + 4},5,v{T + 5}'))
    o.append(valu(f'v_and_b32 v{T + 6},1,v{T + 3}'))
    o.append(valu(f'v_lshl_add_u32 v{T + 5},v{T + 6},4,v{T + 5}'))
    o.append(valu(f'v_lshrrev_b32 v{T + 6},1,v{T + 3}'))
    o.append(valu(f'v_lshl_add_u32 v{T + 5},v{T + 6},3,v{T + 5}'))
    for t0 in range(4):
        o.append(valu(f'v_xor_b32 v{T + 6},{t0},v{T + 2}'))
        o.append(valu(f'v_lshl_add_u32 v{V_WQA + t0},v{T + 6},6,v{T + 5}'))
    o.append(valu(f'v_lshl_add_u32 v{T + 5},v{T + 1},2,v{T + 2}'))
    o.append(valu(f'v_lshlrev_b32 v{T + 7},8,v{T + 5}'))
    o.append(valu(f'v_lshl_add_u32 v{T + 7},v{T + 4},5,v{T + 7}'))
    o.append(valu(f'v_lshl_add_u32 v{T + 7},v{T + 3},3,v{T + 7}'))
    for dt in range(4):
        o.append(valu(f'v_xor_b32 v{T + 6},{dt},v{T + 2}'))
        o.append(valu(f'v_lshl_add_u32 v{V_VA + dt},v{T + 6},6,v{T + 7}'))
    o.append(valu(f'v_lshlrev_b32 v{T + 7},7,v{T + 5}'))
    o.append(valu(f'v_lshl_add_u32 v{T + 7},v{T + 4},5,v{T + 7}'))
    o.append(valu(f'v_lshl_add_u32 v{T + 7},v{T + 3},3,v{T + 7}'))
    o.append(valu(f'v_lshrrev_b32 v{T + 8},1,v{T + 2}'))
    for a in range(2):
        o.append(valu(f'v_xor_b32 v{T + 6},{a},v{T + 8}'))
        o.append(valu(f'v_lshl_add_u32 v{V_WOA + a},v{T + 6},6,v{T + 7}'))
    o.append(valu(f'v_bfe_u32 v{T + 2},v{L},1,3'))
    o.append(valu(f'v_xor_b32 v{T + 2},v{T + 2},v{T + 1}'))
    o.append(valu(f'v_lshlrev_b32 v{T + 2},4,v{T + 2}'))
    o.append(valu(f'v_lshl_add_u32 v{T + 2},v{T},7,v{T + 2}'))
    o.append(valu(f'v_add_u32 v{T + 2},s{S_M0B},v{T + 2}'))
    for k in range(4):
        o.append(valu(f'v_xor_b32 v{V_XA + k},{k << 5},v{T + 2}'))
    o.append(salu(f's_mul_i32 s{TT},s{S_WAVE},28672'))
    o.append(valu(f'v_add_u32 v{V_ST},s{TT},v144'))
    o.append(salu(f's_lshl_b32 s{TT},s{S_WAVE},5'))
    o.append(valu(f'v_add_u32 v{T + 6},s{TT},v{T}'))
    o.append(valu(f'v_cmp_gt_u32 vcc,112,v{T + 6}'))
    o.append(salu('s_mov_b64 s[62:63],vcc'))
    o.append(valu(f'v_mov_b32 v{T + 7},0x7ff00000'))
    o.append(valu(f'v_cndmask_b32 v{V_ST},v{T + 7},v{V_ST},s[62:63]'))
    o.append(valu(f'v_mov_b32 v{T + 7},0x45800000'))
    o.append(valu(f'v_mov_b32 v{V_MX},0xff800000'))
    if cfg['zero_pad']:
        o.append(valu(f'v_cndmask_b32 v{V_MX},v{T + 7},v{V_MX},s[62:63]'))
    o.append(valu(f'v_mov_b32 v{V_L},0'))
    o.append(wait_tag(('X', 0)))
    o.append(wait_tag(('WQ', 0)))
    o.extend(p.stamp())
    o.append(barrier())
    o.extend(p.stamp())


def x_reads(p, c):
    off = (p.region[('X', c)] * REG) & 0xffff
    return [ds_read('ds_read_b128', ('a', A_X + 16 * (c & 1) + 4 * k), 4, V_XA + k, off) for k in range(4)]


def v_dma_setup():
    L, T = V_LANE, V_KT + 8
    o = [valu(f'v_lshrrev_b32 v{T},4,v{L}'), valu(f'v_and_b32 v{T + 1},15,v{L}'),
         valu(f'v_lshlrev_b32 v{T + 2},2,v{T}'), valu(f'v_xor_b32 v{T + 1},v{T + 1},v{T + 2}'),
         valu(f'v_lshlrev_b32 v{T + 1},4,v{T + 1}'), valu(f'v_lshl_add_u32 v{V_DV},v{T},9,v{T + 1}')]
    for i in range(1, 4):
        o.append(valu(f'v_add_u32 v{V_DV + i},{1024 * i},v{V_DV}'))
    return o


def kaddr_setup():
    L, T = V_LANE, V_KT
    o = [valu(f'v_and_b32 v{T},31,v{L}'), valu(f'v_lshrrev_b32 v{T + 1},5,v{L}'),
         valu(f'v_and_b32 v{T + 2},15,v{L}'), valu(f'v_xor_b32 v{T + 2},v{T + 2},v{T + 1}'),
         valu(f'v_lshlrev_b32 v{T + 2},4,v{T + 2}'), valu(f'v_lshl_add_u32 v{T + 2},v{T},9,v{T + 2}')]
    for ks in range(8):
        o.append(valu(f'v_xor_b32 v{V_KA + ks},{ks << 5},v{T + 2}'))
    return o


def wo_dma_setup():
    L, T = V_LANE, V_KT + 8
    o = [valu(f'v_lshrrev_b32 v{T},3,v{L}'), valu(f'v_mul_u32_u24 v{T},896,v{T}'),
         valu(f'v_bfe_u32 v{T + 1},v{L},4,1'), valu(f'v_lshlrev_b32 v{T + 1},2,v{T + 1}'),
         valu(f'v_and_b32 v{T + 2},7,v{L}'), valu(f'v_xor_b32 v{T + 1},v{T + 1},v{T + 2}'),
         valu(f'v_lshl_add_u32 v{V_DW},v{T + 1},4,v{T}')]
    for i in range(1, 4):
        o.append(valu(f'v_add_u32 v{V_DW + i},{6144 * i},v{V_DW}'))
    return o


def frag_reads(p, step, i):
    g = step * 16 + i
    dst = A_RING + 4 * (g % NF)
    slot = step_slot(step)
    off = (p.region[slot] * REG) & 0xffff
    k = slot[0]
    if k == 'WQ':
        ks, t = divmod(i, 8)
        base = off + ks * 8192 + (t >> 2) * 256
        return [ds_read('ds_read_b64_tr_b16', ('a', dst + 2 * pp), 2, V_WQA + (t & 3), base + pp * 2048) for pp in range(2)]
    if k == 'K':
        return [ds_read('ds_read_b128', ('a', dst), 4, V_KA + (i & 7), off + (i >> 3) * 256)]
    if k == 'V':
        kk, dt = divmod(i, 4)
        return [ds_read('ds_read_b64_tr_b16', ('a', dst + 2 * pp), 2, V_VA + dt, off + kk * 4096 + pp * 2048) for pp in range(2)]
    ksd, a = divmod(i, 2)
    return [ds_read('ds_read_b64_tr_b16', ('a', dst + 2 * pp), 2, V_WOA + a, off + ksd * 2048 + pp * 1024) for pp in range(2)]


def step_mfma(step, i):
    g = step * 16 + i
    A = ('a', A_RING + 4 * (g % NF))
    k, n = step_slot(step)
    if k == 'WQ':
        ks, t = divmod(i, 8)
        d = ('v', V_QACC + 16 * t)
        return mfma(d, A, ('a', A_X + 16 * ((step >> 1) & 1) + 4 * (2 * (step & 1) + ks)), 0 if (step == 0 and ks == 0) else d)
    if k == 'K':
        d = ('v', sbuf(n))
        return mfma(d, A, ('a', A_QF + 4 * i), 0 if i == 0 else d)
    if k == 'V':
        j = (n - 16) % 8
        kk, dt = divmod(i, 4)
        d = ('v', V_OACC + 16 * dt)
        return mfma(d, A, ('v', V_P + 8 * (2 * j + (kk >> 1)) + 4 * (kk & 1)), 0 if (j == 0 and kk == 0) else d)
    c, j = divmod(n, 7)
    ksd, a = divmod(i, 2)
    d = ('a', 16 * (2 * j + a))
    return mfma(d, A, ('v', V_OACC + 4 * ksd), 0 if (c == 0 and ksd == 0) else d)


def tile_max(j, src, tmp):
    o = []
    for r in range(0, 16, 2):
        o.append(valu(f'v_max3_f32 v{V_MX},v{V_MX},v{src + r},v{src + r + 1}'))
    o.append(valu(f'v_mul_f32 v{tmp},s{S_C},v{V_MX}'))
    o.append(valu(f'v_ceil_f32 v{V_MT + j},v{tmp}'))
    return o


def tile_exp(j, src, tmp, mreg, cfg):
    o = []
    a, t0, t1 = tmp, tmp + 1, tmp + 2
    if j > 0:
        o.append(valu(f'v_sub_f32 v{a},v{V_MT + j - 1},v{mreg}'))
        o.append(valu(f'v_exp_f32 v{a},v{a}'))
    fm = [valu(f'v_fma_f32 v{src + r},v{src + r},s{S_C},-v{mreg}') for r in range(16)]
    ex = [valu(f'v_exp_f32 v{src + r},v{src + r}') for r in range(16)]
    ad = []
    ad.append(valu(f'v_add_f32 v{t0},v{src},v{src + 1}'))
    ad.append(valu(f'v_add_f32 v{t1},v{src + 2},v{src + 3}'))
    for r in range(4, 16):
        t = t0 if r % 2 == 0 else t1
        ad.append(valu(f'v_add_f32 v{t},v{t},v{src + r}'))
    cv = [valu(f'v_cvt_pk_bf16_f32 v{V_P + 8 * j + k},v{src + 2 * k},v{src + 2 * k + 1}') for k in range(8)]
    seq = []
    for r in range(16 + 4):
        if r < 16:
            seq.append(fm[r])
        if 1 <= r <= 16:
            seq.append(ex[r - 1])
        q = r - 3
        if q == 1:
            seq.append(ad[0])
        elif q == 3:
            seq.append(ad[1])
        elif 4 <= q < 16:
            seq.append(ad[q - 2])
        if q >= 1 and q % 2 == 1 and q < 16:
            seq.append(cv[q // 2])
    o += seq
    o.append(valu(f'v_add_f32 v{t0},v{t0},v{t1}'))
    if j > 0:
        o.append(valu(f'v_fma_f32 v{V_L},v{V_L},v{a},v{t0}'))
    else:
        o.append(valu(f'v_mov_b32 v{V_L},v{t0}'))
    return o


def tile_rescale(t, mf, tmp):
    o = [valu(f'v_sub_f32 v{tmp},v{mf},v{V_MT + t}'),
         valu(f'v_min_f32 v{tmp},0x437f0000,v{tmp}'),
         valu(f'v_cvt_u32_f32 v{tmp},v{tmp}'),
         valu(f'v_mul_u32_u24 v{tmp},0x800080,v{tmp}')]
    for k in range(8):
        r = V_P + 8 * t + k
        o.append(valu(f'v_pk_sub_u16 v{r},v{r},v{tmp} clamp'))
    return o


def ocvt(ksd):
    o = []
    for r in range(8):
        s = V_OACC + 8 * ksd + r
        o.append(valu(f'v_mul_f32 v{s},v{s},v{V_RL}'))
    for j in range(4):
        s = V_OACC + 8 * ksd + 2 * j
        o.append(valu(f'v_cvt_pk_bf16_f32 v{V_OACC + 4 * ksd + j},v{s},v{s + 1}'))
    return o


def out_tile_epi(cfg, nt, tb):
    o = []
    for r in range(16):
        o.append(valu(f'v_accvgpr_read_b32 v{tb + r},a{16 * nt + r}'))
    for j in range(8):
        o.append(valu(f'v_cvt_pk_bf16_f32 v{tb + j},v{tb + 2 * j},v{tb + 2 * j + 1}'))
    o.append(salu(f's_lshl_b32 s{S_OFF2},s{S_R + nt // 2},5'))
    if nt & 1:
        o.append(salu(f's_add_u32 s{S_OFF2},s{S_OFF2},2048'))
    o.append(buf_store(('v', tb), 4, V_ST, S_P, f's{S_OFF2}', 0, cfg['p_st_flags'], 'ST'))
    o.append(buf_store(('v', tb + 4), 4, V_ST, S_P, f's{S_OFF2}', 1024, cfg['p_st_flags'], 'ST'))
    return o


def build(cfg):
    p = Prog(cfg)
    p.pre.extend(p.stamp())
    prologue(p)
    o = p.pre
    o.extend(x_reads(p, 0))
    for i in range(LA):
        o.extend(frag_reads(p, 0, i))

    for step in range(NSTEP):
        for i in range(16):
            p.mf[step * 16 + i] = step_mfma(step, i)

    reads_at = {}
    for step in range(NSTEP):
        for i in range(16):
            if step == 0 and i < LA:
                continue
            g = step * 16 + i - LA
            if step > 0:
                g = max(g, (step - 1) * 16 + BG)
            reads_at.setdefault(g, []).append((step, i))

    segs = {'X': Seg([V_XA + k for k in range(4)]), 'WQ': Seg([V_WQA + k for k in range(4)]), 'K': Seg([V_KA + k for k in range(8)]),
            'V': Seg([V_VA + k for k in range(4)]), 'WO': Seg([V_WOA + k for k in range(2)])}
    fine = cfg.get('fine', ())
    for step in range(NSTEP):
        g0 = step * 16
        nxt = step + 1
        for g in range(g0, g0 + 16):
            if g == g0 + BG:
                bl = []
                if step in fine:
                    bl.extend(p.stamp())
                if nxt < NSTEP:
                    slot = step_slot(nxt)
                    if slot not in p.regbase:
                        bl.append(wait_tag(slot))
                if nxt <= 12 and nxt % 2 == 0:
                    bl.append(wait_tag(('X', nxt // 2)))
                bl.append(wait_lgkm(0))
                if step in fine or (not fine and step in (13, 29, 37, 44, 52)):
                    bl.extend(p.stamp())
                bl.append(barrier())
                if step in fine:
                    bl.extend(p.stamp())
                if nxt == ST_K:
                    bl.extend(kaddr_setup())
                if nxt < NSTEP:
                    slot = step_slot(nxt)
                    bl.extend(segs[slot[0]].move((p.region[slot] * REG) >> 16))
                if nxt <= 12 and nxt % 2 == 0:
                    bl.extend(segs['X'].move((p.region[('X', nxt // 2)] * REG) >> 16))
                    bl.extend(x_reads(p, nxt // 2))
                p.at(g, *bl)
            for (st, i) in reads_at.get(g, []):
                p.at(g, *frag_reads(p, st, i))
            if cfg['pairwait'] and (g % 2 == 0):
                regs = R('a', A_RING + 4 * (g % NF), 4) + R('a', A_RING + 4 * ((g + 1) % NF), 4)
                p.at(g, wait_regs(regs))

    per_step = {}
    for when, slot, mode in p.plan:
        if when != 'pro':
            per_step.setdefault(when, []).append((slot, mode))
    for when, lst in per_step.items():
        g = 1 if when == 'g0' else when * 16 + BG + 1
        span = 11 if when == 'g0' else 15
        ndma = sum(1 for _, m in lst if m != 'xfer')
        d = min(cfg['dstride'], max(1, span // (4 * ndma))) if ndma else 1
        for slot, mode in lst:
            ins = p.slot_loads(slot, mode)
            if mode == 'xfer':
                p.at(g, wait_tag(slot))
                for k, x in enumerate(ins):
                    p.at(g + k, x)
                continue
            npre = len(ins) - 4
            p.at(g, *ins[:npre + 1])
            for k, x in enumerate(ins[npre + 1:]):
                p.at(g + d * (k + 1), x)
            g += 3 * d + d
        lim = (BG + 1) if when == 'g0' else when * 16 + BG + 17
        assert g - d <= lim, (when, g)
    p.spread(v_dma_setup(), 12 * 16, 12 * 16 + 10)
    p.spread(wo_dma_setup(), 20 * 16, 20 * 16 + 10)

    T = V_KT + 8
    for t in range(8):
        ins = []
        for j in range(8):
            ins.append(valu(f'v_cvt_pk_bf16_f32 v{T + j},v{V_QACC + 16 * t + 2 * j},v{V_QACC + 16 * t + 2 * j + 1}'))
        for j in range(8):
            ins.append(valu(f'v_accvgpr_write_b32 a{A_QF + 8 * t + j},v{T + j}'))
        g = min(13 * 16 + 8 + t + 4, ST_K * 16 + 2 * t - 1) if t > 0 else 13 * 16 + 12
        p.at(g, *ins)

    for j in range(15):
        src = sbuf(j)
        ins = tile_max(j, src, V_KT) + tile_exp(j, src, V_KT + 1, V_MT + j, cfg)
        g = (ST_K + j + 1) * 16 + 4
        p.spread(ins, g, g + 14)

    VT = V_VT
    MF = VT + 7
    tr = tile_max(15, V_T, VT)
    tr += [valu(f'v_mov_b32 v{VT},v{V_MT + 15}'),
           valu(f'v_mov_b32 v{MF},v{V_MT + 15}'),
           valu(f'v_permlane32_swap_b32 v{VT},v{MF}'),
           valu(f'v_max_f32 v{MF},v{MF},v{VT}')]
    tr += tile_rescale(0, MF, VT) + tile_rescale(1, MF, VT + 1)
    if not fine:
        p.at(ST_V0 * 16, *p.stamp())
    p.at(ST_V0 * 16, *tr)
    if not fine:
        p.at(ST_V0 * 16, *p.stamp())
    ins = tile_exp(15, V_T, VT + 2, MF, cfg)
    ins += [valu(f'v_mov_b32 v{VT + 2},v{V_L}'),
            valu(f'v_permlane32_swap_b32 v{VT + 2},v{V_L}'),
            valu(f'v_add_f32 v{V_L},v{V_L},v{VT + 2}'),
            valu(f'v_rcp_f32 v{V_RL},v{V_L}')]
    if cfg['zero_pad']:
        ins.append(valu(f'v_cndmask_b32 v{V_RL},0,v{V_RL},s[62:63]'))
    p.spread(ins, ST_V0 * 16 + 1, ST_V0 * 16 + 30)
    for j in range(7):
        ins = []
        for t in (2 * j + 2, 2 * j + 3):
            if t < 15:
                ins += tile_rescale(t, MF, VT + (t & 1))
        p.spread(ins, (ST_V0 + j) * 16 + 1, (ST_V0 + j) * 16 + 14)

    for st in (ST_O0, ST_O1):
        for ksd in range(8):
            g = st * 16 + max(0, 2 * ksd - 2)
            p.at(g, *ocvt(ksd))

    for j in range(7):
        for a in range(2):
            ins = out_tile_epi(cfg, 2 * j + a, 16 * ((2 * j + a) % 4))
            if j < 6:
                g = (ST_O1 + j + 1) * 16 + 2 + 7 * a
                p.spread(ins, g, g + 6)
            else:
                p.post.extend(ins)
    return p


def render(p, out):
    for x in p.pre:
        out.add(x)
    for g in range(NSTEP * 16):
        for x in p.gaps[g]:
            out.add(x)
        out.add(p.mf[g])
    for x in p.gaps[NSTEP * 16]:
        out.add(x)
    for x in p.post:
        out.add(x)
    if p.cfg['stamps']:
        for x in p.stamp():
            out.add(x)
        out.add(wait_vm(0))
        for x in p.stamp():
            out.add(x)
        out._emit('s_memrealtime s[62:63]')
        out._emit('s_waitcnt lgkmcnt(0)')
        out._emit('s_lshl_b32 s54,s2,2')
        out._emit(f's_add_u32 s54,s54,s{S_WAVE}')
        out._emit('s_lshl_b32 s54,s54,7')
        out._emit('s_add_u32 s18,s18,s54')
        out._emit('s_addc_u32 s19,s19,0')
        out._emit('s_add_u32 s18,s18,0x8000000')
        out._emit('s_addc_u32 s19,s19,0')
        out._emit('v_mov_b32 v0,0')
        for i in range(p.nstamp):
            out._emit(f'v_mov_b32 v1,s{S_ST + 2 * i}')
            out._emit(f'global_store_dword v0,v1,s[18:19] offset:{4 * i}')
            out._emit('s_nop 1')
        out._emit('v_mov_b32 v1,s62')
        out._emit('global_store_dword v0,v1,s[18:19] offset:124')
        out._emit('v_mov_b32 v1,s61')
        out._emit('global_store_dword v0,v1,s[18:19] offset:120')
    out._emit('s_endpgm')


KD = """.amdhsa_kernel {name}
  .amdhsa_next_free_vgpr {vgpr}
  .amdhsa_next_free_sgpr 102
  .amdhsa_accum_offset {acc}
  .amdhsa_group_segment_fixed_size 0
  .amdhsa_kernarg_size 64
  .amdhsa_user_sgpr_count 2
  .amdhsa_user_sgpr_kernarg_segment_ptr 1
  .amdhsa_system_sgpr_workgroup_id_x 1
  .amdhsa_float_denorm_mode_32 3
.end_amdhsa_kernel
"""


def kernel1(cfg):
    o = Out()
    o._emit('s_cmp_ge_u32 s2,256')
    o._emit('s_cbranch_scc1 L_exit1')
    if cfg['stamps']:
        o._emit('s_memrealtime s[62:63]')
        o._emit('s_waitcnt lgkmcnt(0)')
        o._emit('s_mov_b32 s61,s62')
    p = build(cfg)
    render(p, o)
    txt = o.text() + '\nL_exit1:\ns_endpgm\n'
    return txt, (o.counts, o.n_nop, p.region)


def kernel2(cfg):
    from gen import kernel2 as k2
    return k2(cfg)


HEADER = """; Fused multi-head attention block (Q projection, attention over a K/V cache, output projection)
; @launch kernel={k1} grid=(256,1,1) block=(256,1,1) lds=163840
; @launch kernel={k2} grid=(448,1,1) block=(256,1,1) lds=0
.amdgcn_target "amdgcn-amd-amdhsa--gfx950"
"""


def generate(cfg):
    t1, info = kernel1(cfg)
    t2 = kernel2(cfg)
    s = HEADER.format(k1=KN1, k2=KN2)
    if cfg.get('only') == 1:
        s = '\n'.join(l for l in s.split('\n') if KN2 not in l)
    if cfg.get('only') == 2:
        s = '\n'.join(l for l in s.split('\n') if ('kernel=' + KN1) not in l)
    s += '.text\n'
    s += f'.set CODE_SLICES,(L_code_end-{KN1})/1024\n'
    s += f'.globl {KN1}\n.p2align 8\n.type {KN1},@function\n{KN1}:\n' + t1 + 'L_code_end:\n'
    s += f'.globl {KN2}\n.p2align 8\n.type {KN2},@function\n{KN2}:\n' + t2 + '\n'
    probe = cfg.get('probe')
    if probe is not None:
        L = []
        A = L.append
        A("s_cmp_ge_u32 s2,256"); A("s_cbranch_scc1 L_endp")
        A("s_load_dwordx4 s[4:7],s[0:1],8")
        A("v_lshrrev_b32 v2,6,v0"); A("s_nop 1"); A("v_readfirstlane_b32 s22,v2")
        A("v_and_b32 v3,63,v0"); A("v_lshlrev_b32 v4,4,v3")
        A("s_waitcnt lgkmcnt(0)")
        A("s_lshl_b32 s3,s2,18")
        A("s_add_u32 s8,s4,s3"); A("s_addc_u32 s9,s5,0"); A("s_mov_b32 s10,0x40000"); A("s_mov_b32 s11,0x20000")
        A("s_add_u32 s12,s6,s3"); A("s_addc_u32 s13,s7,0"); A("s_mov_b32 s14,0x40000"); A("s_mov_b32 s15,0x20000")
        A("s_lshl_b32 s24,s22,12")
        fl = '' if probe == 'plain' else probe
        nsl = int(cfg.get('probe_n', 32))
        for k in range(nsl):
            srd = "s[8:11]" if k < 16 else "s[12:15]"
            A(f"s_add_u32 m0,s24,{(k % 8) * 16384}")
            A(f"s_add_u32 s25,s24,{(k % 16) * 16384}")
            if k >= 4:
                A("s_waitcnt vmcnt(12)")
            for i in range(4):
                A(f"buffer_load_dwordx4 v4,{srd},s25 offen offset:{i * 1024} {fl} lds")
        A("s_waitcnt vmcnt(0)")
        A("L_endp:"); A("s_endpgm")
        s += '.globl probe_kernel\n.p2align 8\n.type probe_kernel,@function\nprobe_kernel:\n' + '\n'.join(L) + '\n'
        s = s.replace('; @launch kernel=' + KN1, '; @launch kernel=probe_kernel grid=(256,1,1) block=(256,1,1) lds=163840\n; @launch kernel=' + KN1, 1)
    s += '.section .rodata,"a"\n.p2align 6\n'
    if probe is not None:
        s += KD.format(name='probe_kernel', vgpr=64, acc=64) + '.p2align 6\n'
    s += KD.format(name=KN1, vgpr=512, acc=256)
    s += '.p2align 6\n'
    s += KD.format(name=KN2, vgpr=80, acc=80)
    return s, info


if __name__ == '__main__':
    cfg = dict(CFG)
    outp = sys.argv[1]
    for a in sys.argv[2:]:
        k, v = a.split('=', 1)
        if v in ('True', 'False'):
            v = v == 'True'
        elif v.lstrip('-').isdigit():
            v = int(v)
        if k == 'fine':
            v = tuple(int(t) for t in str(v).split('.'))
        cfg[k] = v
    import emit
    emit.FAKE16 = bool(cfg.get('fake16'))
    s, info = generate(cfg)
    open(outp, 'w').write(s)
    print(outp, len(s), 'bytes', info)
```
